```python
import torch

def _softmax(x, axis=-1):
    return torch.softmax(x, dim=axis)

def _gelu(x):
    return torch.nn.functional.gelu(x, approximate='tanh')

def _silu(x):
    return torch.nn.functional.silu(x)

def _sigmoid(x):
    return torch.sigmoid(x)

def _layernorm(x, axis=-1, eps=1e-05):
    m = x.mean(dim=axis, keepdim=True)
    v = x.var(dim=axis, keepdim=True, unbiased=False)
    return (x - m) / torch.sqrt(v + eps)

def _scatter_add(tgt, idx, src, axis=0):
    return tgt.clone().index_add_(axis, idx, src)

def _segment_sum(src, seg, n):
    out = torch.zeros((n,) + src.shape[1:], dtype=src.dtype)
    return out.index_add_(0, seg, src)

def _pad(x, pw):
    flat = tuple((v for pair in reversed(pw) for v in pair))
    return torch.nn.functional.pad(x, flat)
kernel_name = 'adaLN_cond__gqa_block_cached__swiglu_ffn__prompt'

def setup_inputs():

    _w = lambda a: (lambda t: t.to(torch.bfloat16) if t.is_floating_point() else t)(torch.as_tensor(a))

    def _A_setup():
        B, Sq, D = (1, 2048, 448)
        Hq, Hkv, Sk, Dh = (16, 8, 2048, 256)
        assert Hq % Hkv == 0, (Hq, Hkv)
        return {'x': _w((lambda *s: torch.randn(*s, dtype=torch.bfloat16) * 0.05)(B, Sq, D)), 'k_cache': _w((lambda *s: torch.randn(*s, dtype=torch.bfloat16) * 3.2)(B, Hkv, Sk, Dh)), 'v_cache': _w((lambda *s: torch.randn(*s, dtype=torch.bfloat16) * 0.4)(B, Hkv, Sk, Dh)), 'wq': _w((lambda *s: torch.randn(*s, dtype=torch.bfloat16) * 3.2)(D, Hq * Dh) * D ** (-0.5)), 'wo': _w((lambda *s: torch.randn(*s, dtype=torch.bfloat16) * 0.4)(Hq * Dh, D) * (Hq * Dh) ** (-0.5))}
    _A_in = _A_setup()

    def _B_setup():
        B, S, D, F = (1, 2048, 448, 1792)
        return {'x': _w((lambda *s: torch.randn(*s, dtype=torch.bfloat16) * 0.05)(B, S, D)), 'w_gate': _w((lambda *s: torch.randn(*s, dtype=torch.bfloat16) * 0.05)(D, F)), 'w_up': _w((lambda *s: torch.randn(*s, dtype=torch.bfloat16) * 0.05)(D, F)), 'w_down': _w((lambda *s: torch.randn(*s, dtype=torch.bfloat16) * 0.05)(F, D))}
    _B_in = _B_setup()
    return {'A_x': _A_in['x'], 'A_k_cache': _A_in['k_cache'], 'A_v_cache': _A_in['v_cache'], 'A_wq': _A_in['wq'], 'A_wo': _A_in['wo'], 'B_x': _B_in['x'], 'B_w_gate': _B_in['w_gate'], 'B_w_up': _B_in['w_up'], 'B_w_down': _B_in['w_down'], 'c': _w((lambda *s: torch.randn(*s, dtype=torch.bfloat16) * 0.2)(1, 448) * 8.0), 'w_mod': _w((lambda *s: torch.randn(*s, dtype=torch.bfloat16) * 0.2)(448, 6 * 448) * 448 ** (-0.5) * 8.0)}

def reference(A_x, A_k_cache, A_v_cache, A_wq, A_wo, B_x, B_w_gate, B_w_up, B_w_down, c, w_mod):

    def _A_ref(x, k_cache, v_cache, wq, wo):
        B, Sq, D = x.shape
        Hq, Dh = (16, 256)
        Hkv = k_cache.shape[1]
        rep = Hq // Hkv
        q = (lambda x, *d: x.permute(*d))((x @ wq).reshape(B, Sq, Hq, Dh), 0, 2, 1, 3)
        k = (lambda x, n, axis: torch.repeat_interleave(x, n, dim=axis))(k_cache, rep, axis=1)
        v = (lambda x, n, axis: torch.repeat_interleave(x, n, dim=axis))(v_cache, rep, axis=1)
        scores = torch.einsum('bhqd,bhkd->bhqk', q, k) * Dh ** (-0.5)
        p = _softmax(scores, axis=-1)
        o = torch.einsum('bhqk,bhkd->bhqd', p, v)
        return (lambda x, *d: x.permute(*d))(o, 0, 2, 1, 3).reshape(B, Sq, Hq * Dh) @ wo

    def _B_ref(x, w_gate, w_up, w_down):
        g = _silu(x @ w_gate)
        u = x @ w_up
        return g * u @ w_down
    x = A_x
    mod = (_silu(c) @ w_mod).reshape(c.shape[0], 6, 1, -1)
    sa, ca, ga, sb, cb, gb = (mod[:, 0].clone(), mod[:, 1].clone(), mod[:, 2].clone(), mod[:, 3].clone(), mod[:, 4].clone(), mod[:, 5].clone())
    h = _layernorm(x, axis=-1) * (1 + ca) + sa
    x = x + ga * _A_ref(h, A_k_cache, A_v_cache, A_wq, A_wo)
    h = _layernorm(x, axis=-1) * (1 + cb) + sb
    x = x + gb * _B_ref(h, B_w_gate, B_w_up, B_w_down)
    return x
```

```python
class Asm:
    def __init__(self):
        self.lines = []
        self.uid = 0
    def __call__(self, s):
        for l in s.strip("\n").split("\n"):
            self.lines.append("    " + l.strip())
    def raw(self, s):
        self.lines.append(s)
    def label(self, name):
        self.lines.append(name + ":")
    def newlabel(self, pfx="L"):
        self.uid += 1
        return f"{pfx}_{self.uid}"
    def text(self):
        return "\n".join(self.lines) + "\n"

def vr(b, n=1):
    return f"v{b}" if n == 1 else f"v[{b}:{b+n-1}]"
def ar(b, n=1):
    return f"a{b}" if n == 1 else f"a[{b}:{b+n-1}]"
def sr(b, n=1):
    return f"s{b}" if n == 1 else f"s[{b}:{b+n-1}]"

def kernel_header(a, name):
    a.raw(f".globl {name}")
    a.raw(".p2align 8")
    a.raw(f".type {name},@function")
    a.raw(f"{name}:")

def kernel_desc(name, vgpr, accum, sgpr=102):
    return f""".amdhsa_kernel {name}
  .amdhsa_next_free_vgpr {vgpr}
  .amdhsa_next_free_sgpr {sgpr}
  .amdhsa_accum_offset {accum}
  .amdhsa_group_segment_fixed_size 0
  .amdhsa_kernarg_size 112
  .amdhsa_user_sgpr_count 2
  .amdhsa_user_sgpr_kernarg_segment_ptr 1
  .amdhsa_system_sgpr_workgroup_id_x 1
.end_amdhsa_kernel
"""

def make_srd(a, d, base, nbytes):
    a(f"s_mov_b32 s{d}, s{base}")
    a(f"s_mov_b32 s{d+1}, s{base+1}")
    a(f"s_mov_b32 s{d+2}, {nbytes}")
    a(f"s_mov_b32 s{d+3}, 0x00020000")

KA = dict(x=0, k=8, v=16, wq=24, wo=32, bx=40, wg=48, wu=56, wd=64, c=72, wmod=80, out=88, dbg=96, ws=104)
SZ = dict(x=2048*448*2, k=8*2048*256*2, v=8*2048*256*2, wq=448*4096*2, wo=4096*448*2, wg=448*1792*2,
          wu=448*1792*2, wd=1792*448*2, c=896, wmod=448*2688*2, out=2048*448*2, ws=268435456)
WS_MOD = 0
WS_H1 = 1 << 20
WS_X2 = 3 << 20
WS_H2 = 5 << 20
WS_ACT = 8 << 20
WS_PART = 16 << 20
```

```python
from asmlib import *

S_K, S_V, S_WQ, S_WO, S_WS = 8, 12, 16, 20, 24
sWAVE, sKVH, sQB, sHSEL, sTSEL = 28, 29, 30, 31, 32
sKOFF, sVOFF, sLOOP, sC, sTHR, sW4K = 33, 34, 35, 36, 37, 38
sT0, sT1, sT2, sT3 = 40, 41, 42, 43

vLANE = 1
vKB = 2
vVB = 10
vKD = 14
vVD = 18
vM, vL, vS0, vS1 = 20, 21, 22, 23
vT = 24
vS = [40, 56]
vP = [72, 80]
vKF = 88
vVF = 104
vX = 120
vH = 128
aO = 0
aQ = 128

LDS_K = 0
LDS_V = 65536
LDS_EX = 98304
THRESH = 0x4b800000

class LQ:
    def __init__(self, a):
        self.a = a
        self.q = []
    def issue(self, tag):
        self.q.append(tag)
    def need(self, tags):
        idx = -1
        for i, t in enumerate(self.q):
            if t in tags:
                idx = i
        if idx < 0:
            return
        n = len(self.q) - 1 - idx
        assert n <= 15
        self.a(f"s_waitcnt lgkmcnt({n})")
        self.q = self.q[idx+1:]
    def drain(self):
        if self.q:
            self.a("s_waitcnt lgkmcnt(0)")
        self.q = []

def mfma(d, A, B, C):
    return f"v_mfma_f32_32x32x16_bf16 {d}, {A}, {B}, {C}"

def lane_fields(a):
    a(f"v_and_b32 v{vLANE}, 63, v0")
    a(f"v_lshrrev_b32 v120, 5, v{vLANE}")
    a(f"v_bfe_u32 v121, v{vLANE}, 2, 2")
    a(f"v_and_b32 v122, 3, v{vLANE}")
    a(f"v_bfe_u32 v123, v{vLANE}, 4, 1")
    a(f"v_and_b32 v124, 31, v{vLANE}")

def tr_base(a, dst, rowmul_h, pitch, dl, add):
    a(f"v_mul_u32_u24 v126, {rowmul_h}, v120")
    a(f"v_add_u32 v126, v126, v121")
    a(f"v_mul_u32_u24 v126, {pitch}, v126")
    a(f"v_xor_b32 v127, {dl}, v121")
    a(f"v_lshlrev_b32 v127, 6, v127")
    a(f"v_add_u32 v126, v126, v127")
    a(f"v_lshlrev_b32 v127, 5, v123")
    a(f"v_add_u32 v126, v126, v127")
    a(f"v_lshlrev_b32 v127, 3, v122")
    a(f"v_add_u32 v126, v126, v127")
    if isinstance(add, str):
        a(f"v_add_u32 v{dst}, {add}, v126")
    else:
        a(f"v_add_u32 v{dst}, {add}, v126")

def softmax_stream(sb, pb):
    S = vS[sb]; P = vP[pb]
    out = []
    pend = []
    for i in range(8):
        tk = vT + 3*(i % 3); ta = tk+1; tb = tk+2
        cur = [f"v_cvt_pk_bf16_f32 v{tk}, v{S+2*i}, v{S+2*i+1}",
               f"v_lshlrev_b32 v{ta}, 16, v{tk}",
               f"v_and_b32 v{tb}, 0xffff0000, v{tk}",
               f"v_fma_f32 v{ta}, v{ta}, s{sC}, -v{vM}",
               f"v_fma_f32 v{tb}, v{tb}, s{sC}, -v{vM}",
               f"v_exp_f32 v{ta}, v{ta}",
               f"v_exp_f32 v{tb}, v{tb}"]
        out.append(cur[0])
        out += pend
        out += cur[1:]
        if i == 0:
            pend = [f"v_mov_b32 v{vS0}, v{ta}", f"v_mov_b32 v{vS1}, v{tb}"]
        else:
            pend = [f"v_add_f32 v{vS0}, v{vS0}, v{ta}", f"v_add_f32 v{vS1}, v{vS1}, v{tb}"]
        pend.append(f"v_cvt_pk_bf16_f32 v{P+i}, v{ta}, v{tb}")
    out.append("s_nop 0")
    out += pend
    out.append(f"v_add_f32 v{vS0}, v{vS0}, v{vS1}")
    return out

def slots_cost(ins):
    if ins.startswith("v_exp"): return 2
    return 1

def gen_attn(a, name):
    kernel_header(a, name)
    L_end = a.newlabel("Lat_end")
    a("s_cmp_ge_u32 s2, 256")
    a(f"s_cbranch_scc1 {L_end}")
    a(f"s_load_dwordx4 s[44:47], s[0:1], {KA['k']}")
    a(f"s_load_dwordx4 s[48:51], s[0:1], {KA['wq']}")
    a(f"s_load_dwordx2 s[52:53], s[0:1], {KA['ws']}")
    a("v_lshrrev_b32 v2, 6, v0")
    a("s_nop 0")
    a(f"v_readfirstlane_b32 s{sWAVE}, v2")
    a(f"s_and_b32 s{sKVH}, s2, 7")
    a(f"s_lshr_b32 s{sQB}, s2, 3")
    a("s_waitcnt lgkmcnt(0)")
    make_srd(a, S_K, 44, SZ['k'])
    make_srd(a, S_V, 46, SZ['v'])
    make_srd(a, S_WQ, 48, SZ['wq'])
    make_srd(a, S_WO, 50, SZ['wo'])
    make_srd(a, S_WS, 52, 64 << 20)
    a(f"s_lshr_b32 s{sHSEL}, s{sWAVE}, 1")
    a(f"s_and_b32 s{sTSEL}, s{sWAVE}, 1")
    a(f"s_lshl_b32 s{sW4K}, s{sWAVE}, 12")
    a(f"s_mov_b32 s{sC}, 0x3db8aa3b")
    a(f"s_mov_b32 s{sTHR}, {THRESH:#x}")
    lane_fields(a)
    a(f"s_lshl_b32 s{sT0}, s{sQB}, 6")
    a(f"s_lshl_b32 s{sT1}, s{sTSEL}, 5")
    a(f"s_add_u32 s{sT0}, s{sT0}, s{sT1}")
    a(f"v_add_u32 v126, s{sT0}, v124")
    a(f"v_mul_u32_u24 v126, 896, v126")
    a(f"v_lshlrev_b32 v127, 4, v120")
    a(f"v_add_u32 v126, v126, v127")
    a(f"s_mov_b32 s{sT1}, {WS_H1}")
    for s in range(28):
        a(f"buffer_load_dwordx4 v[{vH+4*s}:{vH+4*s+3}], v126, s[{S_WS}:{S_WS+3}], s{sT1} offen offset:{32*s}")
    vWQD = 112
    for jp in range(2):
        a(f"v_add_u32 v126, {2*jp}, v120")
        a(f"v_and_b32 v126, 3, v126")
        a(f"v_lshlrev_b32 v126, 2, v126")
        a(f"v_xor_b32 v126, v126, v124")
        a(f"v_lshlrev_b32 v126, 4, v126")
        a(f"v_lshlrev_b32 v127, 13, v120")
        a(f"v_add_u32 v{vWQD+jp}, v126, v127")
    vQB = 114
    a(f"s_lshl_b32 s{sT1}, s{sHSEL}, 16")
    for dl in range(4):
        tr_base(a, vQB+dl, 8, 512, dl, f"s{sT1}")
    a(f"s_lshl_b32 s{sT2}, s{sKVH}, 10")
    a(f"s_lshl_b32 s{sT3}, s{sWAVE}, 16")
    a(f"s_add_u32 s{sT2}, s{sT2}, s{sT3}")
    def wq_dma(step):
        for hs in range(2):
            for jj in range(4):
                a(f"s_add_u32 m0, s{sW4K}, {hs*65536 + (step%4)*16384 + jj*1024}")
                a(f"s_add_u32 s{sT3}, s{sT2}, {step*32*8192 + jj*16384 + hs*512}")
                a(f"buffer_load_dwordx4 v{vWQD + (jj&1)}, s[{S_WQ}:{S_WQ+3}], s{sT3} offen lds")
    for st in range(3):
        wq_dma(st)
    lq = LQ(a)
    for st in range(14):
        issued = min(st+3, 14)
        a(f"s_waitcnt vmcnt({8*(issued-st-1)})")
        a("s_barrier")
        if st + 3 < 14:
            wq_dma(st+3)
        slot = (st % 4) * 16384
        seq = [(ks, dt) for ks in range(2) for dt in range(8)]
        def rd(n):
            ks, dt = seq[n]
            fb = vVF + 4*(n % 4) if False else vKF + 4*(n % 6)
            off = slot + ks*8192 + (dt >> 2)*256
            a(f"ds_read_b64_tr_b16 v[{fb}:{fb+1}], v{vQB + (dt&3)} offset:{off}")
            a(f"ds_read_b64_tr_b16 v[{fb+2}:{fb+3}], v{vQB + (dt&3)} offset:{off+2048}")
            lq.issue(('b', n)); lq.issue(('b', n))
        for n in range(4):
            rd(n)
        for n in range(16):
            ks, dt = seq[n]
            fb = vKF + 4*(n % 6)
            lq.need({('b', n)})
            kstep = st*2 + ks
            C = "0" if kstep == 0 else f"a[{aO+16*dt}:{aO+16*dt+15}]"
            a(mfma(f"a[{aO+16*dt}:{aO+16*dt+15}]", f"v[{fb}:{fb+3}]", f"v[{vH+4*kstep}:{vH+4*kstep+3}]", C))
            if n + 4 < 16:
                rd(n+4)
    a("s_barrier")
    a("v_and_b32 v125, 15, v124")
    for sl in range(8):
        a(f"v_add_u32 v126, {2*sl}, v120")
        a(f"v_xor_b32 v126, v126, v125")
        a(f"v_lshlrev_b32 v126, 4, v126")
        a(f"v_lshlrev_b32 v127, 9, v124")
        a(f"v_add_u32 v{vKB+sl}, v126, v127")
    for dl in range(4):
        tr_base(a, vVB+dl, 4, 512, dl, LDS_V)
    a(f"s_lshl_b32 s{sT0}, s{sWAVE}, 3")
    a(f"v_add_u32 v125, s{sT0}, v120")
    for j in range(4):
        a(f"v_add_u32 v126, {2*j}, v125")
        a(f"v_and_b32 v126, 15, v126")
        a(f"v_xor_b32 v126, v126, v124")
        a(f"v_lshlrev_b32 v126, 4, v126")
        a(f"v_lshlrev_b32 v127, 9, v125")
        a(f"v_add_u32 v{vKD+j}, v126, v127")
    for jp in range(2):
        a(f"v_add_u32 v126, {2*jp}, v120")
        a(f"v_and_b32 v126, 3, v126")
        a(f"v_lshlrev_b32 v126, 2, v126")
        a(f"v_xor_b32 v126, v126, v124")
        a(f"v_lshlrev_b32 v126, 4, v126")
        a(f"v_lshlrev_b32 v127, 9, v125")
        a(f"v_add_u32 v{vVD+jp}, v126, v127")
    a(f"s_lshl_b32 s{sKOFF}, s{sKVH}, 20")
    a(f"s_lshl_b32 s{sVOFF}, s{sKVH}, 20")
    def k_dma_list(slot):
        out = [f"s_add_u32 m0, s{sW4K}, {LDS_K + slot*16384}", "s_nop 0"]
        for j in range(4):
            out.append(f"buffer_load_dwordx4 v{vKD+j}, s[{S_K}:{S_K+3}], s{sKOFF} offen offset:{j*1024} lds")
        out.append(f"s_add_u32 s{sKOFF}, s{sKOFF}, 16384")
        return out
    def v_dma_list(slot):
        out = [f"s_add_u32 m0, s{sW4K}, {LDS_V + slot*16384}", "s_nop 0"]
        for j in range(4):
            out.append(f"buffer_load_dwordx4 v{vVD+(j&1)}, s[{S_V}:{S_V+3}], s{sVOFF} offen offset:{j*1024} lds")
        out.append(f"s_add_u32 s{sVOFF}, s{sVOFF}, 16384")
        return out
    for t in range(3):
        for l in k_dma_list(t): a(l)
    for t in range(2):
        for l in v_dma_list(t): a(l)
    a("s_nop 7")
    for dt in range(8):
        for u in range(2):
            for g in range(2):
                base = aO + 16*dt + 4*(2*u+g)
                for e in range(4):
                    a(f"v_accvgpr_read_b32 v{vT+e}, a{base+e}")
                a(f"v_cvt_pk_bf16_f32 v{vT+8+2*g}, v{vT}, v{vT+1}")
                a(f"v_cvt_pk_bf16_f32 v{vT+9+2*g}, v{vT+2}, v{vT+3}")
            a("s_nop 1")
            a(f"v_permlane32_swap_b32 v{vT+8}, v{vT+10}")
            a(f"v_permlane32_swap_b32 v{vT+9}, v{vT+11}")
            a("s_nop 0")
            for e in range(4):
                a(f"v_accvgpr_write_b32 a{aQ + (dt*2+u)*4 + e}, v{vT+8+e}")
    for r in range(128):
        a(f"v_accvgpr_write_b32 a{aO+r}, 0")
    a(f"v_mov_b32 v{vM}, 0xff800000")
    a(f"v_mov_b32 v{vL}, 0")

    slow_paths = []

    def k_read(kslot, s, fb):
        a(f"ds_read_b128 v[{fb}:{fb+3}], v{vKB + (s&7)} offset:{LDS_K + kslot*16384 + (s>>3)*256}")
    def v_read(vslot, j, fb):
        ks, dt = j // 8, j % 8
        off = vslot*16384 + ks*8192 + (dt >> 2)*256
        a(f"ds_read_b64_tr_b16 v[{fb}:{fb+1}], v{vVB + (dt&3)} offset:{off}")
        a(f"ds_read_b64_tr_b16 v[{fb+2}:{fb+3}], v{vVB + (dt&3)} offset:{off+4096}")

    VPRE = 3

    def body(t, do_qk, do_pv, do_sm, next_pv, vm_wait, dma_k, dma_v):
        par = t & 1
        kslot = (t+1) % 4
        vslot = (t-1) % 4
        nvslot = t % 4
        Sn = vS[1-par]
        Pp = vP[1-par]
        if vm_wait is not None:
            a(f"s_waitcnt vmcnt({vm_wait})")
            a("s_barrier")
        if do_qk and do_pv:
            order = ['P']*4 + ['Q','Q','P']*8 + ['P']*4
        elif do_qk:
            order = ['Q']*16
        else:
            order = ['P']*16
        qi = pi = 0
        seq = []
        for o in order:
            if o == 'Q': seq.append(('Q', qi)); qi += 1
            else: seq.append(('P', pi)); pi += 1
        fill = []
        if dma_k is not None: fill += k_dma_list(dma_k)
        if dma_v is not None: fill += v_dma_list(dma_v)
        sm = softmax_stream(par, par) if do_sm else []
        nm = len(seq)
        kq_next = 0; vq_next = VPRE if do_pv else 0
        def issue_k():
            nonlocal kq_next
            if do_qk and kq_next < 16:
                k_read(kslot, kq_next, vKF + 4*(kq_next % 4)); lq.issue(('K', kq_next)); kq_next += 1
        def issue_v():
            nonlocal vq_next
            if do_pv and vq_next < 16:
                v_read(vslot, vq_next, vVF + 4*(vq_next % 4)); lq.issue(('V', vq_next)); lq.issue(('V', vq_next)); vq_next += 1
        for _ in range(3): issue_k()
        smi = 0
        total_sm = sum(slots_cost(x) for x in sm)
        npre = 0
        for n, (ty, idx) in enumerate(seq):
            if ty == 'Q':
                lq.need({('K', idx)})
                fb = vKF + 4*(idx % 4)
                C = "0" if idx == 0 else f"v[{Sn}:{Sn+15}]"
                a(mfma(f"v[{Sn}:{Sn+15}]", f"v[{fb}:{fb+3}]", f"a[{aQ+4*idx}:{aQ+4*idx+3}]", C))
                issue_k()
            else:
                lq.need({('V', idx)})
                fb = vVF + 4*(idx % 4)
                ks, dt = idx // 8, idx % 8
                a(mfma(f"a[{aO+16*dt}:{aO+16*dt+15}]", f"v[{fb}:{fb+3}]", f"v[{Pp+4*ks}:{Pp+4*ks+3}]", f"a[{aO+16*dt}:{aO+16*dt+15}]"))
                issue_v()
            k = 0
            while fill and k < 2:
                x = fill.pop(0); a(x)
                if not x.startswith("s_"): k += 1
            tgt = total_sm * (n+1) / (nm - 2) if nm > 2 else total_sm
            done = sum(slots_cost(x) for x in sm[:smi])
            while smi < len(sm) and done < tgt:
                a(sm[smi]); done += slots_cost(sm[smi]); smi += 1
            if next_pv and n >= nm - VPRE - 1 and npre < VPRE and (not do_pv or vq_next >= 16):
                if (not do_pv) or ('P', 12 + npre) in seq[:n+1]:
                    v_read(nvslot, npre, vVF + 4*(npre % 4)); lq.issue(('V', npre)); lq.issue(('V', npre)); npre += 1
        for x in fill: a(x)
        while smi < len(sm):
            a(sm[smi]); smi += 1
        while next_pv and npre < VPRE:
            v_read(nvslot, npre, vVF + 4*(npre % 4)); lq.issue(('V', npre)); lq.issue(('V', npre)); npre += 1
        if do_sm:
            Ls = a.newlabel("Lslow"); Lr = a.newlabel("Lret")
            a(f"v_cmp_nle_f32 vcc, v{vS0}, s{sTHR}") if False else a(f"v_cmp_lt_f32 vcc, s{sTHR}, v{vS0}")
            a("s_nop 1")
            a(f"s_cbranch_vccnz {Ls}")
            a.label(Lr)
            a(f"v_add_f32 v{vL}, v{vL}, v{vS0}")
            slow_paths.append((Ls, Lr, par))

    a("s_waitcnt vmcnt(16)")
    a("s_barrier")
    body(-1, True, False, False, False, None, None, None)
    a("s_nop 7")
    body(0, True, False, True, True, 4, 3, 2)
    a("s_nop 7")
    Lloop = a.newlabel("Lloop")
    a(f"s_mov_b32 s{sLOOP}, 0")
    a.label(Lloop)
    q0 = list(lq.q)
    for t in (1, 2, 3, 4):
        body(t, True, True, True, True, 8, (t+3) % 4, (t+2) % 4)
    assert q0 == lq.q, (q0, lq.q)
    a(f"s_add_u32 s{sLOOP}, s{sLOOP}, 1")
    a(f"s_cmp_lt_u32 s{sLOOP}, 15")
    a(f"s_cbranch_scc1 {Lloop}")
    body(61, True, True, True, True, 8, None, (61+2) % 4)
    body(62, True, True, True, True, 4, None, None)
    body(63, False, True, True, False, 4, None, None)
    a("s_waitcnt vmcnt(0)")
    a("s_barrier")
    VPRE_save = VPRE
    def final_pv():
        vslot = 63 % 4
        Pp = vP[1]
        for j in range(3):
            v_read(vslot, j, vVF + 4*(j % 4)); lq.issue(('V', j)); lq.issue(('V', j))
        for j in range(16):
            lq.need({('V', j)})
            fb = vVF + 4*(j % 4)
            ks, dt = j // 8, j % 8
            a(mfma(f"a[{aO+16*dt}:{aO+16*dt+15}]", f"v[{fb}:{fb+3}]", f"v[{Pp+4*ks}:{Pp+4*ks+3}]", f"a[{aO+16*dt}:{aO+16*dt+15}]"))
            if j + 3 < 16:
                v_read(vslot, j+3, vVF + 4*((j+3) % 4)); lq.issue(('V', j+3)); lq.issue(('V', j+3))
    final_pv()
    a("s_barrier")
    vWOD = 2
    for rr in range(4):
        a(f"v_xor_b32 v126, {rr<<2}, v{vLANE}")
        a(f"v_lshlrev_b32 v{vWOD+rr}, 4, v126")
    a(f"s_lshl_b32 s{sT2}, s{sKVH}, 9")
    a(f"s_lshl_b32 s{sT3}, s{sWAVE}, 2")
    a(f"s_add_u32 s{sT2}, s{sT2}, s{sT3}")
    a(f"s_mul_i32 s{sT2}, s{sT2}, 896")
    def wo_dma(j):
        for rr in range(4):
            a(f"s_add_u32 m0, s{sW4K}, {(j%4)*16384 + rr*1024}")
            a(f"s_add_u32 s{sT3}, s{sT2}, {j*16*896 + rr*896}")
            a(f"buffer_load_dwordx4 v{vWOD+rr}, s[{S_WO}:{S_WO+3}], s{sT3} offen lds")
    for j in range(3):
        wo_dma(j)
    a(f"v_mov_b32 v{vT}, v{vL}")
    a("s_nop 1")
    a(f"v_permlane32_swap_b32 v{vL}, v{vT}")
    a("s_nop 1")
    a(f"v_add_f32 v{vL}, v{vL}, v{vT}")
    a(f"v_rcp_f32 v{vL}, v{vL}")
    a("s_nop 7")
    a("s_nop 7")
    a(f"v_lshlrev_b32 v6, 4, v{vLANE}")
    a(f"s_lshl_b32 s{sT0}, s{sWAVE}, 14")
    a(f"v_add_u32 v6, s{sT0}, v6")
    for dt in range(8):
        for q in range(4):
            base = aO + 16*dt + 4*q
            for e in range(4):
                a(f"v_accvgpr_read_b32 v{vT+e}, a{base+e}")
            for e in range(4):
                a(f"v_mul_f32 v{vT+e}, v{vT+e}, v{vL}")
            a(f"v_cvt_pk_bf16_f32 v{vH+dt*8+q*2}, v{vT}, v{vT+1}")
            a(f"v_cvt_pk_bf16_f32 v{vH+dt*8+q*2+1}, v{vT+2}, v{vT+3}")
        for u in range(2):
            a(f"ds_write_b128 v6, v[{vH+dt*8+u*4}:{vH+dt*8+u*4+3}] offset:{LDS_EX - 65536 + (dt*2+u)*1024}") if False else None
    a(f"v_add_u32 v6, {LDS_EX}, v6")
    for i in range(16):
        a(f"ds_write_b128 v6, v[{vH+4*i}:{vH+4*i+3}] offset:{i*1024}")
    a("s_waitcnt lgkmcnt(0)")
    a("s_barrier")
    a(f"v_lshlrev_b32 v6, 4, v{vLANE}")
    a(f"s_lshl_b32 s{sT0}, s{sTSEL}, 14")
    a(f"s_add_u32 s{sT0}, s{sT0}, {LDS_EX}")
    a(f"v_add_u32 v6, s{sT0}, v6")
    for hs in range(2):
        for i in range(16):
            a(f"ds_read_b128 v[{vH+64*hs+4*i}:{vH+64*hs+4*i+3}], v6 offset:{hs*32768 + i*1024}")
        a("s_waitcnt lgkmcnt(0)")
    vOB = 8
    a(f"s_mul_i32 s{sT0}, s{sHSEL}, 7")
    for i in range(7):
        a(f"s_add_u32 s{sT1}, s{sT0}, {i}")
        a(f"v_xor_b32 v125, s{sT1}, v121")
        a(f"v_lshlrev_b32 v125, 6, v125")
        a(f"v_lshl_add_u32 v126, v120, 2, v121")
        a(f"v_lshlrev_b32 v126, 10, v126")
        a(f"v_add_u32 v125, v125, v126")
        a(f"v_lshlrev_b32 v126, 5, v123")
        a(f"v_add_u32 v125, v125, v126")
        a(f"v_lshlrev_b32 v126, 3, v122")
        a(f"v_add_u32 v{vOB+i}, v125, v126")
    lq.q = []
    for j in range(32):
        issued = min(j+3, 32)
        a(f"s_waitcnt vmcnt({4*(issued-j-1)})")
        a("s_barrier")
        if j + 3 < 32:
            wo_dma(j+3)
        slot = (j % 4)*16384
        def rd(i):
            fb = vKF + 4*(i % 6) if False else 40 + 4*i
            a(f"ds_read_b64_tr_b16 v[{fb}:{fb+1}], v{vOB+i} offset:{slot}")
            a(f"ds_read_b64_tr_b16 v[{fb+2}:{fb+3}], v{vOB+i} offset:{slot+8192}")
            lq.issue(('o', i)); lq.issue(('o', i))
        for i in range(7): rd(i)
        for i in range(7):
            lq.need({('o', i)})
            fb = 40 + 4*i
            C = "0" if j == 0 else f"a[{16*i}:{16*i+15}]"
            a(mfma(f"a[{16*i}:{16*i+15}]", f"v[{fb}:{fb+3}]", f"v[{vH+4*j}:{vH+4*j+3}]", C))
    a(f"s_lshl_b32 s{sT0}, s{sQB}, 6")
    a(f"s_lshl_b32 s{sT1}, s{sTSEL}, 5")
    a(f"s_add_u32 s{sT0}, s{sT0}, s{sT1}")
    a(f"s_lshl_b32 s{sT1}, s{sKVH}, 11")
    a(f"s_add_u32 s{sT0}, s{sT0}, s{sT1}")
    a(f"v_add_u32 v6, s{sT0}, v124")
    a(f"s_mov_b32 s{sT1}, 1792")
    a(f"v_mul_lo_u32 v6, v6, s{sT1}")
    a(f"v_lshlrev_b32 v7, 4, v120")
    a(f"v_add_u32 v6, v6, v7")
    a(f"s_mul_i32 s{sT1}, s{sHSEL}, 896")
    a(f"s_add_u32 s{sT1}, s{sT1}, {WS_PART}")
    a("s_nop 7")
    a("s_nop 7")
    for i in range(7):
        for q in range(4):
            r0 = 40 + 4*((i*4+q) % 8)
            for e in range(4):
                a(f"v_accvgpr_read_b32 v{r0+e}, a{16*i+4*q+e}")
            a("s_nop 0")
            a(f"buffer_store_dwordx4 v[{r0}:{r0+3}], v6, s[{S_WS}:{S_WS+3}], s{sT1} offen offset:{i*128+q*32}")
    a("s_waitcnt vmcnt(0)")
    a.label(L_end)
    a("s_endpgm")
    for (Ls, Lr, par) in slow_paths:
        S = vS[par]
        a.label(Ls)
        a(f"v_max3_f32 v{vT}, v{S}, v{S+1}, v{S+2}")
        for i in range(3, 15, 2):
            a(f"v_max3_f32 v{vT}, v{vT}, v{S+i}, v{S+i+1}")
        a(f"v_max_f32 v{vT}, v{vT}, v{S+15}")
        a(f"v_mov_b32 v{vT+1}, v{vT}")
        a("s_nop 1")
        a(f"v_permlane32_swap_b32 v{vT}, v{vT+1}")
        a("s_nop 1")
        a(f"v_max_f32 v{vT}, v{vT}, v{vT+1}")
        a(f"v_cvt_pk_bf16_f32 v{vT}, v{vT}, v{vT}")
        a(f"v_lshlrev_b32 v{vT}, 16, v{vT}")
        a(f"v_mul_f32 v{vT}, s{sC}, v{vT}")
        a(f"v_max_f32 v{vT}, v{vT}, v{vM}")
        a(f"v_sub_f32 v{vT+1}, v{vM}, v{vT}")
        a(f"v_exp_f32 v{vT+1}, v{vT+1}")
        a(f"v_mov_b32 v{vM}, v{vT}")
        a("s_nop 7")
        a("s_nop 7")
        a(f"v_mul_f32 v{vL}, v{vL}, v{vT+1}")
        for r in range(0, 128, 4):
            for e in range(4):
                a(f"v_accvgpr_read_b32 v{vT+4+e}, a{aO+r+e}")
            for e in range(4):
                a(f"v_mul_f32 v{vT+4+e}, v{vT+4+e}, v{vT+1}")
            for e in range(4):
                a(f"v_accvgpr_write_b32 a{aO+r+e}, v{vT+4+e}")
        for x in softmax_stream(par, par):
            a(x)
        a("s_nop 1")
        a(f"s_branch {Lr}")
    return kernel_desc(name, 512, 256)
```

```python
from asmlib import *
from k_attn import LQ, mfma, lane_fields, tr_base

def gen_gateup(a, name):
    S_G, S_U, S_WS = 8, 12, 16
    sWAVE, sTB, sFS, sFH, sTSEL, sW4K = 28, 29, 30, 31, 32, 33
    sT0, sT1, sT2, sT3 = 40, 41, 42, 43
    vH = 128
    kernel_header(a, name)
    L_end = a.newlabel("Lgu_end")
    a("s_cmp_ge_u32 s2, 224")
    a(f"s_cbranch_scc1 {L_end}")
    a(f"s_load_dwordx4 s[44:47], s[0:1], {KA['wg']}")
    a(f"s_load_dwordx2 s[52:53], s[0:1], {KA['ws']}")
    a("v_lshrrev_b32 v2, 6, v0")
    a("s_nop 0")
    a(f"v_readfirstlane_b32 s{sWAVE}, v2")
    a(f"s_mul_hi_u32 s{sTB}, s2, 0x24924925")
    a(f"s_mul_i32 s{sT0}, s{sTB}, 7")
    a(f"s_sub_u32 s{sFS}, s2, s{sT0}")
    a("s_waitcnt lgkmcnt(0)")
    make_srd(a, S_G, 44, SZ['wg'])
    make_srd(a, S_U, 46, SZ['wu'])
    make_srd(a, S_WS, 52, 64 << 20)
    a(f"s_lshr_b32 s{sFH}, s{sWAVE}, 1")
    a(f"s_and_b32 s{sTSEL}, s{sWAVE}, 1")
    a(f"s_lshl_b32 s{sW4K}, s{sWAVE}, 12")
    lane_fields(a)
    a(f"s_lshl_b32 s{sT0}, s{sTB}, 6")
    a(f"s_lshl_b32 s{sT1}, s{sTSEL}, 5")
    a(f"s_add_u32 s{sT0}, s{sT0}, s{sT1}")
    a(f"v_add_u32 v110, s{sT0}, v124")
    a(f"v_mul_u32_u24 v126, 896, v110")
    a(f"v_lshlrev_b32 v127, 4, v120")
    a(f"v_add_u32 v126, v126, v127")
    a(f"s_mov_b32 s{sT1}, {WS_H2}")
    for s in range(28):
        a(f"buffer_load_dwordx4 v[{vH+4*s}:{vH+4*s+3}], v126, s[{S_WS}:{S_WS+3}], s{sT1} offen offset:{32*s}")
    vWD = 112
    for jp in range(2):
        a(f"v_add_u32 v126, {2*jp}, v120")
        a(f"v_and_b32 v126, 3, v126")
        a(f"v_lshlrev_b32 v126, 2, v126")
        a(f"v_xor_b32 v126, v126, v124")
        a(f"v_lshlrev_b32 v126, 4, v126")
        a(f"v_mul_u32_u24 v127, 3584, v120")
        a(f"v_add_u32 v{vWD+jp}, v126, v127")
    vQB = 114
    a(f"s_lshl_b32 s{sT1}, s{sFH}, 8")
    for dl in range(4):
        tr_base(a, vQB+dl, 8, 512, dl, f"s{sT1}")
    a(f"s_lshl_b32 s{sT2}, s{sFS}, 9")
    a(f"s_mul_i32 s{sT3}, s{sWAVE}, {8*3584}")
    a(f"s_add_u32 s{sT2}, s{sT2}, s{sT3}")
    def dma(step):
        for gu in range(2):
            srd = S_G if gu == 0 else S_U
            for jj in range(4):
                a(f"s_add_u32 m0, s{sW4K}, {gu*65536 + (step%4)*16384 + jj*1024}")
                a(f"s_add_u32 s{sT3}, s{sT2}, {step*32*3584 + jj*2*3584}")
                a(f"buffer_load_dwordx4 v{vWD + (jj&1)}, s[{srd}:{srd+3}], s{sT3} offen lds")
    for st in range(3):
        dma(st)
    for dl in range(4):
        a(f"v_add_u32 v{104+dl}, 65536, v{vQB+dl}")
    lq = LQ(a)
    for st in range(14):
        issued = min(st+3, 14)
        a(f"s_waitcnt vmcnt({8*(issued-st-1)})")
        a("s_barrier")
        if st + 3 < 14:
            dma(st+3)
        slot = (st % 4) * 16384
        seq = [(ks, gu, i) for ks in range(2) for gu in range(2) for i in range(4)]
        def rd(n):
            ks, gu, i = seq[n]
            fb = 40 + 4*(n % 8)
            base = (vQB if gu == 0 else 104) + i
            off = slot + ks*8192
            a(f"ds_read_b64_tr_b16 v[{fb}:{fb+1}], v{base} offset:{off}")
            a(f"ds_read_b64_tr_b16 v[{fb+2}:{fb+3}], v{base} offset:{off+2048}")
            lq.issue(('b', n)); lq.issue(('b', n))
        for n in range(5):
            rd(n)
        for n in range(16):
            ks, gu, i = seq[n]
            fb = 40 + 4*(n % 8)
            lq.need({('b', n)})
            kstep = st*2 + ks
            acc = (gu*4 + i)*16
            C = "0" if kstep == 0 else f"a[{acc}:{acc+15}]"
            a(mfma(f"a[{acc}:{acc+15}]", f"v[{fb}:{fb+3}]", f"v[{vH+4*kstep}:{vH+4*kstep+3}]", C))
            if n + 5 < 16:
                rd(n+5)
    a(f"v_mul_u32_u24 v6, 3584, v110")
    a(f"v_lshlrev_b32 v7, 4, v120")
    a(f"v_add_u32 v6, v6, v7")
    a(f"s_lshl_b32 s{sT0}, s{sFS}, 9")
    a(f"s_lshl_b32 s{sT1}, s{sFH}, 8")
    a(f"s_add_u32 s{sT0}, s{sT0}, s{sT1}")
    a(f"s_add_u32 s{sT0}, s{sT0}, {WS_ACT}")
    a("s_nop 7")
    a("s_nop 7")
    for i in range(4):
        for u in range(2):
            for g in range(2):
                q = 2*u + g
                for e in range(4):
                    a(f"v_accvgpr_read_b32 v{10+e}, a{i*16+4*q+e}")
                    a(f"v_accvgpr_read_b32 v{14+e}, a{64+i*16+4*q+e}")
                for p in range(2):
                    e0, e1 = 10+2*p, 11+2*p
                    u0, u1 = 14+2*p, 15+2*p
                    a(f"v_cvt_pk_bf16_f32 v18, v{e0}, v{e1}")
                    a(f"v_lshlrev_b32 v{e0}, 16, v18")
                    a(f"v_and_b32 v{e1}, 0xffff0000, v18")
                    a(f"v_cvt_pk_bf16_f32 v18, v{u0}, v{u1}")
                    a(f"v_lshlrev_b32 v{u0}, 16, v18")
                    a(f"v_and_b32 v{u1}, 0xffff0000, v18")
                    a(f"v_mul_f32 v19, 0xbfb8aa3b, v{e0}")
                    a(f"v_mul_f32 v20, 0xbfb8aa3b, v{e1}")
                    a("v_exp_f32 v19, v19")
                    a("v_exp_f32 v20, v20")
                    a("s_nop 0")
                    a("v_add_f32 v19, 1.0, v19")
                    a("v_add_f32 v20, 1.0, v20")
                    a("v_rcp_f32 v19, v19")
                    a("v_rcp_f32 v20, v20")
                    a("s_nop 0")
                    a(f"v_mul_f32 v{e0}, v{e0}, v19")
                    a(f"v_mul_f32 v{e1}, v{e1}, v20")
                    a(f"v_cvt_pk_bf16_f32 v18, v{e0}, v{e1}")
                    a(f"v_lshlrev_b32 v{e0}, 16, v18")
                    a(f"v_and_b32 v{e1}, 0xffff0000, v18")
                    a(f"v_mul_f32 v{e0}, v{e0}, v{u0}")
                    a(f"v_mul_f32 v{e1}, v{e1}, v{u1}")
                    a(f"v_cvt_pk_bf16_f32 v{24+2*g+p}, v{e0}, v{e1}")
            a("s_nop 1")
            a("v_permlane32_swap_b32 v24, v26")
            a("v_permlane32_swap_b32 v25, v27")
            a("s_nop 0")
            a(f"buffer_store_dwordx4 v[24:27], v6, s[{S_WS}:{S_WS+3}], s{sT0} offen offset:{i*64+u*32}")
            a("s_nop 1")
    a("s_waitcnt vmcnt(0)")
    a.label(L_end)
    a("s_endpgm")
    return kernel_desc(name, 256+128, 256)

def gen_down(a, name):
    S_D, S_WS, S_OUT = 8, 12, 16
    sWAVE, sTB, sNB, sNS, sTSEL, sW4K = 28, 29, 30, 31, 32, 33
    sT0, sT1, sT2, sT3, sAOFF = 40, 41, 42, 43, 39
    kernel_header(a, name)
    L_end = a.newlabel("Ldn_end")
    a("s_cmp_ge_u32 s2, 224")
    a(f"s_cbranch_scc1 {L_end}")
    a(f"s_load_dwordx2 s[44:45], s[0:1], {KA['wd']}")
    a(f"s_load_dwordx2 s[46:47], s[0:1], {KA['out']}")
    a(f"s_load_dwordx2 s[52:53], s[0:1], {KA['ws']}")
    a("v_lshrrev_b32 v2, 6, v0")
    a("s_nop 0")
    a(f"v_readfirstlane_b32 s{sWAVE}, v2")
    a(f"s_mul_hi_u32 s{sTB}, s2, 0x24924925")
    a(f"s_mul_i32 s{sT0}, s{sTB}, 7")
    a(f"s_sub_u32 s{sNB}, s2, s{sT0}")
    a("s_waitcnt lgkmcnt(0)")
    make_srd(a, S_D, 44, SZ['wd'])
    make_srd(a, S_OUT, 46, SZ['out'])
    make_srd(a, S_WS, 52, 64 << 20)
    a(f"s_lshr_b32 s{sNS}, s{sWAVE}, 1")
    a(f"s_and_b32 s{sTSEL}, s{sWAVE}, 1")
    a(f"s_lshl_b32 s{sW4K}, s{sWAVE}, 12")
    lane_fields(a)
    a(f"s_lshl_b32 s{sT0}, s{sTB}, 6")
    a(f"s_lshl_b32 s{sT1}, s{sTSEL}, 5")
    a(f"s_add_u32 s{sT0}, s{sT0}, s{sT1}")
    a(f"v_add_u32 v110, s{sT0}, v124")
    a(f"v_mul_u32_u24 v111, 3584, v110")
    a(f"v_lshlrev_b32 v127, 4, v120")
    a(f"v_add_u32 v111, v111, v127")
    a(f"v_lshrrev_b32 v126, 3, v1")
    a(f"v_bfe_u32 v127, v126, 1, 1")
    a(f"v_lshlrev_b32 v127, 2, v127")
    a(f"v_and_b32 v125, 7, v1")
    a(f"v_xor_b32 v125, v125, v127")
    a(f"v_lshlrev_b32 v125, 4, v125")
    a(f"v_mul_u32_u24 v126, 896, v126")
    a(f"v_add_u32 v112, v125, v126")
    a(f"s_lshl_b32 s{sT2}, s{sNB}, 7")
    a(f"s_mul_i32 s{sT3}, s{sWAVE}, {32*896}")
    a(f"s_add_u32 s{sT2}, s{sT2}, s{sT3}")
    def dma(t):
        for jj in range(4):
            a(f"s_add_u32 m0, s{sW4K}, {(t%4)*16384 + jj*1024}")
            a(f"s_add_u32 s{sT3}, s{sT2}, {t*128*896 + jj*8*896}")
            a(f"buffer_load_dwordx4 v112, s[{S_D}:{S_D+3}], s{sT3} offen lds")
    a(f"v_lshl_add_u32 v126, v120, 3, v121")
    a(f"v_lshlrev_b32 v126, 7, v126")
    a(f"v_bfe_u32 v127, v121, 1, 1")
    a(f"v_xor_b32 v127, s{sNS}, v127")
    a(f"v_lshlrev_b32 v127, 6, v127")
    a(f"v_add_u32 v126, v126, v127")
    a(f"v_lshlrev_b32 v127, 5, v123")
    a(f"v_add_u32 v126, v126, v127")
    a(f"v_lshlrev_b32 v127, 3, v122")
    a(f"v_add_u32 v113, v126, v127")
    NT = 14
    def act_load(t):
        b = 128 + 32*(t % 2)
        a(f"s_mov_b32 s{sAOFF}, {WS_ACT + t*256}")
        for s in range(8):
            a(f"buffer_load_dwordx4 v[{b+4*s}:{b+4*s+3}], v111, s[{S_WS}:{S_WS+3}], s{sAOFF} offen offset:{32*s}")
    dma(0); act_load(0); dma(1); act_load(1); dma(2)
    lq = LQ(a)
    for t in range(NT):
        n_after = (4 if t+1 < NT else 0) + (8 if t+1 < NT else 0) + (4 if t+2 < NT else 0)
        a(f"s_waitcnt vmcnt({n_after})")
        a("s_barrier")
        slot = (t % 4)*16384
        b = 128 + 32*(t % 2)
        def rd(s):
            fb = 40 + 4*s
            a(f"ds_read_b64_tr_b16 v[{fb}:{fb+1}], v113 offset:{slot + s*2048}")
            a(f"ds_read_b64_tr_b16 v[{fb+2}:{fb+3}], v113 offset:{slot + s*2048 + 512}")
            lq.issue(('d', s)); lq.issue(('d', s))
        for s in range(4): rd(s)
        for s in range(8):
            lq.need({('d', s)})
            fb = 40 + 4*s
            C = "0" if (t == 0 and s == 0) else "v[80:95]"
            a(mfma("v[80:95]", f"v[{fb}:{fb+3}]", f"v[{b+4*s}:{b+4*s+3}]", C))
            if s + 4 < 8: rd(s+4)
        if t + 2 < NT:
            act_load(t+2)
        if t + 3 < NT:
            dma(t+3)
    a(f"s_lshl_b32 s{sT0}, s{sNB}, 7")
    a(f"s_lshl_b32 s{sT1}, s{sNS}, 6")
    a(f"s_add_u32 s{sT0}, s{sT0}, s{sT1}")
    a(f"v_mul_u32_u24 v6, 896, v110")
    a(f"v_lshlrev_b32 v7, 3, v120")
    a(f"v_add_u32 v8, v6, v7")
    a(f"s_add_u32 s{sT1}, s{sT0}, {WS_X2}")
    a(f"s_add_u32 s{sT2}, s{sT0}, {WS_MOD + 5*896}")
    for q in range(4):
        a(f"buffer_load_dwordx2 v[{10+2*q}:{11+2*q}], v8, s[{S_WS}:{S_WS+3}], s{sT1} offen offset:{q*16}")
        a(f"buffer_load_dwordx2 v[{20+2*q}:{21+2*q}], v7, s[{S_WS}:{S_WS+3}], s{sT2} offen offset:{q*16}")
    a("s_waitcnt vmcnt(0)")
    a("s_nop 7")
    a(f"v_lshlrev_b32 v7, 4, v120")
    a(f"v_add_u32 v6, v6, v7")
    for u in range(2):
        for g in range(2):
            q = 2*u + g
            for p in range(2):
                f0, f1 = 80+4*q+2*p, 81+4*q+2*p
                a(f"v_cvt_pk_bf16_f32 v30, v{f0}, v{f1}")
                a(f"v_lshlrev_b32 v31, 16, v30")
                a(f"v_and_b32 v32, 0xffff0000, v30")
                a(f"v_lshlrev_b32 v33, 16, v{20+2*q+p}")
                a(f"v_and_b32 v34, 0xffff0000, v{20+2*q+p}")
                a(f"v_mul_f32 v31, v31, v33")
                a(f"v_mul_f32 v32, v32, v34")
                a(f"v_cvt_pk_bf16_f32 v30, v31, v32")
                a(f"v_lshlrev_b32 v31, 16, v30")
                a(f"v_and_b32 v32, 0xffff0000, v30")
                a(f"v_lshlrev_b32 v33, 16, v{10+2*q+p}")
                a(f"v_and_b32 v34, 0xffff0000, v{10+2*q+p}")
                a(f"v_add_f32 v31, v31, v33")
                a(f"v_add_f32 v32, v32, v34")
                a(f"v_cvt_pk_bf16_f32 v{100+2*g+p}, v31, v32")
        a("s_nop 1")
        a("v_permlane32_swap_b32 v100, v102")
        a("v_permlane32_swap_b32 v101, v103")
        a("s_nop 0")
        a(f"buffer_store_dwordx4 v[100:103], v6, s[{S_OUT}:{S_OUT+3}], s{sT0} offen offset:{u*32}")
        a("s_nop 1")
    a("s_waitcnt vmcnt(0)")
    a.label(L_end)
    a("s_endpgm")
    return kernel_desc(name, 192, 192)
```

```python
from asmlib import *

LOG2E = 0x3fb8aa3b

def round_pair(a, va, vb, tmp):
    a(f"v_cvt_pk_bf16_f32 v{tmp}, v{va}, v{vb}")
    a(f"v_lshlrev_b32 v{va}, 16, v{tmp}")
    a(f"v_and_b32 v{vb}, 0xffff0000, v{tmp}")

def round_one(a, va, tmp):
    a(f"v_cvt_pk_bf16_f32 v{tmp}, v{va}, v{va}")
    a(f"v_lshlrev_b32 v{va}, 16, v{tmp}")

def gen_mod(a, name):
    kernel_header(a, name)
    L_end = a.newlabel("Lmod_end")
    a(f"s_cmp_ge_u32 s2, 42")
    a(f"s_cbranch_scc1 {L_end}")
    a(f"s_load_dwordx2 s[4:5], s[0:1], {KA['c']}")
    a(f"s_load_dwordx2 s[6:7], s[0:1], {KA['wmod']}")
    a(f"s_load_dwordx2 s[8:9], s[0:1], {KA['ws']}")
    a("s_waitcnt lgkmcnt(0)")
    make_srd(a, 12, 4, SZ['c'])
    make_srd(a, 16, 6, SZ['wmod'])
    make_srd(a, 20, 8, 2688*2)
    a("v_lshlrev_b32 v1, 1, v0")
    a("buffer_load_ushort v2, v1, s[12:15], 0 offen")
    a("buffer_load_ushort v3, v1, s[12:15], 0 offen offset:512")
    a("s_waitcnt vmcnt(0)")
    for r in (2, 3):
        a(f"v_lshlrev_b32 v{r}, 16, v{r}")
        a(f"v_mul_f32 v4, 0xbfb8aa3b, v{r}")
        a(f"v_exp_f32 v4, v4")
        a("s_nop 0")
        a(f"v_add_f32 v4, 1.0, v4")
        a(f"v_rcp_f32 v4, v4")
        a("s_nop 0")
        a(f"v_mul_f32 v{r}, v{r}, v4")
        round_one(a, r, 4)
    a("v_lshlrev_b32 v1, 2, v0")
    a("ds_write_b32 v1, v2")
    a("ds_write_b32 v1, v3 offset:1024")
    a("s_waitcnt lgkmcnt(0)")
    a("s_barrier")
    a("v_and_b32 v1, 31, v0")
    a("v_lshrrev_b32 v2, 5, v0")
    a("s_lshl_b32 s3, s2, 7")
    a("v_mul_u32_u24 v3, 56*5376, v2") if False else None
    a("s_mov_b32 s24, 301056")
    a("v_mul_lo_u32 v3, v2, s24")
    a("v_lshlrev_b32 v4, 2, v1")
    a("v_add3_u32 v3, v3, v4, s3")
    for kk in range(56):
        a(f"s_mov_b32 s25, {kk*5376}")
        a(f"buffer_load_dword v{32+kk}, v3, s[16:19], s25 offen")
    a("v_mul_u32_u24 v5, 224, v2")
    for q in range(14):
        a(f"ds_read_b128 v[{96+4*q}:{99+4*q}], v5 offset:{16*q}")
    a("v_mov_b32 v6, 0")
    a("v_mov_b32 v7, 0")
    a("s_waitcnt lgkmcnt(0)")
    for kk in range(56):
        a(f"s_waitcnt vmcnt({55-kk})")
        a(f"v_lshlrev_b32 v8, 16, v{32+kk}")
        a(f"v_and_b32 v9, 0xffff0000, v{32+kk}")
        a(f"v_fmac_f32 v6, v8, v{96+kk}")
        a(f"v_fmac_f32 v7, v9, v{96+kk}")
    a("v_lshlrev_b32 v8, 8, v2")
    a("v_lshlrev_b32 v9, 3, v1")
    a("v_add_u32 v8, v8, v9")
    a("ds_write_b64 v8, v[6:7] offset:2048")
    a("s_waitcnt lgkmcnt(0)")
    a("s_barrier")
    a("v_cmp_gt_u32 vcc, 64, v0")
    a("s_and_saveexec_b64 s[26:27], vcc")
    a(f"s_cbranch_execz {L_end}")
    a("v_lshlrev_b32 v1, 2, v0")
    for q in range(8):
        a(f"ds_read_b32 v{10+q}, v1 offset:{2048+q*256}")
    a("s_waitcnt lgkmcnt(0)")
    for q in range(1, 8):
        a(f"v_add_f32 v10, v10, v{10+q}")
    a("v_cvt_pk_bf16_f32 v10, v10, v10")
    a("v_lshlrev_b32 v1, 1, v0")
    a("v_add_u32 v1, s3, v1")
    a("buffer_store_short v10, v1, s[20:23], 0 offen")
    a("s_waitcnt vmcnt(0)")
    a.label(L_end)
    a("s_endpgm")
    return kernel_desc(name, 160, 160)

def wave_sum(a, v, tmp):
    for off in (0x041F, 0x081F, 0x101F, 0x201F, 0x401F):
        a(f"ds_swizzle_b32 v{tmp}, v{v} offset:{off:#x}")
        a("s_waitcnt lgkmcnt(0)")
        a(f"v_add_f32 v{v}, v{v}, v{tmp}")
    a(f"v_mov_b32 v{tmp}, v{v}")
    a("s_nop 1")
    a(f"v_permlane32_swap_b32 v{v}, v{tmp}")
    a("s_nop 1")
    a(f"v_add_f32 v{v}, v{v}, v{tmp}")

def gen_ln(a, name, variant):
    kernel_header(a, name)
    L_end = a.newlabel("Lln_end")
    a(f"s_cmp_ge_u32 s2, 512")
    a(f"s_cbranch_scc1 {L_end}")
    a(f"s_load_dwordx2 s[4:5], s[0:1], {KA['x']}")
    a(f"s_load_dwordx2 s[8:9], s[0:1], {KA['ws']}")
    a("s_waitcnt lgkmcnt(0)")
    make_srd(a, 12, 4, SZ['x'])
    make_srd(a, 16, 8, 64 << 20)
    a("v_and_b32 v1, 63, v0")
    a("v_lshrrev_b32 v2, 6, v0")
    a("s_lshl_b32 s3, s2, 2")
    a("v_add_u32 v2, s3, v2")
    a("v_mul_u32_u24 v3, 896, v2")
    a("v_lshlrev_b32 v4, 4, v1")
    a("v_add_u32 v3, v3, v4")
    for r in range(10, 26):
        a(f"v_mov_b32 v{r}, 0")
    for r in range(40, 52):
        a(f"v_mov_b32 v{r}, 0")
    a("v_cmp_gt_u32 vcc, 56, v1")
    a("s_and_saveexec_b64 s[26:27], vcc")
    a("buffer_load_dwordx4 v[20:23], v3, s[12:15], 0 offen")
    si, ci = (0, 1) if variant == 'A' else (3, 4)
    a(f"buffer_load_dwordx4 v[40:43], v4, s[16:19], 0 offen offset:{WS_MOD + si*896}")
    a(f"buffer_load_dwordx4 v[44:47], v4, s[16:19], 0 offen offset:{WS_MOD + ci*896}")
    if variant == 'B':
        a(f"buffer_load_dwordx4 v[48:51], v4, s[16:19], 0 offen offset:{WS_MOD + 2*896}")
        a("v_lshlrev_b32 v5, 1, v3")
        for p in range(8):
            a(f"s_mov_b32 s24, {WS_PART + p*2048*1792}")
            a(f"buffer_load_dwordx4 v[{64+8*p}:{67+8*p}], v5, s[16:19], s24 offen")
            a(f"buffer_load_dwordx4 v[{68+8*p}:{71+8*p}], v5, s[16:19], s24 offen offset:16")
    a("s_waitcnt vmcnt(0)")
    for i in range(4):
        a(f"v_lshlrev_b32 v{10+2*i}, 16, v{20+i}")
        a(f"v_and_b32 v{11+2*i}, 0xffff0000, v{20+i}")
    if variant == 'B':
        for p in range(1, 8):
            for e in range(8):
                a(f"v_add_f32 v{64+e}, v{64+e}, v{64+8*p+e}")
        for i in range(4):
            round_pair(a, 64+2*i, 65+2*i, 30)
            a(f"v_lshlrev_b32 v31, 16, v{48+i}")
            a(f"v_and_b32 v32, 0xffff0000, v{48+i}")
            a(f"v_mul_f32 v{64+2*i}, v{64+2*i}, v31")
            a(f"v_mul_f32 v{65+2*i}, v{65+2*i}, v32")
            round_pair(a, 64+2*i, 65+2*i, 30)
            a(f"v_add_f32 v{10+2*i}, v{10+2*i}, v{64+2*i}")
            a(f"v_add_f32 v{11+2*i}, v{11+2*i}, v{65+2*i}")
            a(f"v_cvt_pk_bf16_f32 v{20+i}, v{10+2*i}, v{11+2*i}")
            a(f"v_lshlrev_b32 v{10+2*i}, 16, v{20+i}")
            a(f"v_and_b32 v{11+2*i}, 0xffff0000, v{20+i}")
        a(f"s_mov_b32 s24, {WS_X2}")
        a("buffer_store_dwordx4 v[20:23], v3, s[16:19], s24 offen")
    a("s_mov_b64 exec, s[26:27]")
    a("v_add_f32 v26, v10, v11")
    for e in range(2, 8):
        a(f"v_add_f32 v26, v26, v{10+e}")
    wave_sum(a, 26, 27)
    a("v_mul_f32 v26, 0x3b124925, v26")
    a("v_mov_b32 v28, 0")
    for e in range(8):
        a(f"v_sub_f32 v29, v{10+e}, v26")
        a(f"v_fmac_f32 v28, v29, v29")
    a("v_cmp_gt_u32 vcc, 56, v1")
    a("s_nop 1")
    a("v_cndmask_b32 v28, 0, v28, vcc")
    wave_sum(a, 28, 27)
    a("v_mul_f32 v28, 0x3b124925, v28")
    round_pair(a, 26, 28, 27)
    a("v_add_f32 v28, 0x3727c5ac, v28")
    round_one(a, 28, 27)
    a("v_sqrt_f32 v28, v28")
    a("s_nop 0")
    round_one(a, 28, 27)
    a("v_rcp_f32 v28, v28")
    a("s_nop 0")
    for i in range(4):
        e0, e1 = 10+2*i, 11+2*i
        a(f"v_sub_f32 v{e0}, v{e0}, v26")
        a(f"v_sub_f32 v{e1}, v{e1}, v26")
        round_pair(a, e0, e1, 30)
        a(f"v_mul_f32 v{e0}, v{e0}, v28")
        a(f"v_mul_f32 v{e1}, v{e1}, v28")
        round_pair(a, e0, e1, 30)
        a(f"v_lshlrev_b32 v31, 16, v{44+i}")
        a(f"v_and_b32 v32, 0xffff0000, v{44+i}")
        a("v_add_f32 v31, 1.0, v31")
        a("v_add_f32 v32, 1.0, v32")
        round_pair(a, 31, 32, 30)
        a(f"v_mul_f32 v{e0}, v{e0}, v31")
        a(f"v_mul_f32 v{e1}, v{e1}, v32")
        round_pair(a, e0, e1, 30)
        a(f"v_lshlrev_b32 v31, 16, v{40+i}")
        a(f"v_and_b32 v32, 0xffff0000, v{40+i}")
        a(f"v_add_f32 v{e0}, v{e0}, v31")
        a(f"v_add_f32 v{e1}, v{e1}, v32")
        a(f"v_cvt_pk_bf16_f32 v{20+i}, v{e0}, v{e1}")
    a("v_cmp_gt_u32 vcc, 56, v1")
    a("s_and_saveexec_b64 s[26:27], vcc")
    a(f"s_mov_b32 s24, {WS_H1 if variant == 'A' else WS_H2}")
    a("buffer_store_dwordx4 v[20:23], v3, s[16:19], s24 offen")
    a("s_waitcnt vmcnt(0)")
    a.label(L_end)
    a("s_endpgm")
    return kernel_desc(name, 128 if variant == 'B' else 64, 128 if variant == 'B' else 64)
```

```python
import sys
sys.path.insert(0, "gen")
from asmlib import *
from k_small import gen_mod, gen_ln
from k_attn import gen_attn
from k_ffn import gen_gateup, gen_down

HDR = open("adaLN_cond__gqa_block_cached__swiglu_ffn__prompt.s.ref").read().split("; Override launch")[0]

def main(path):
    a = Asm()
    descs = []
    a.raw('.amdgcn_target "amdgcn-amd-amdhsa--gfx950"')
    a.raw(".text")
    descs.append(gen_mod(a, "mod_kernel"))
    descs.append(gen_ln(a, "ln1_kernel", 'A'))
    descs.append(gen_attn(a, "attn_kernel"))
    descs.append(gen_ln(a, "ln2_kernel", 'B'))
    descs.append(gen_gateup(a, "gateup_kernel"))
    descs.append(gen_down(a, "down_kernel"))
    launch = """; @launch kernel=mod_kernel grid=(42,1,1) block=(256,1,1) lds=4096
; @launch kernel=ln1_kernel grid=(512,1,1) block=(256,1,1) lds=0
; @launch kernel=attn_kernel grid=(256,1,1) block=(256,1,1) lds=163840
; @launch kernel=ln2_kernel grid=(512,1,1) block=(256,1,1) lds=0
; @launch kernel=gateup_kernel grid=(224,1,1) block=(256,1,1) lds=131072
; @launch kernel=down_kernel grid=(224,1,1) block=(256,1,1) lds=65536
"""
    out = HDR + launch + a.text() + '.section .rodata,"a"\n' + "".join(".p2align 6\n" + d for d in descs)
    open(path, "w").write(out)

if __name__ == "__main__":
    main(sys.argv[1] if len(sys.argv) > 1 else "adaLN_cond__gqa_block_cached__swiglu_ffn__prompt.s")
```

```python
from asmlib import *
from stream import stream_loop

S_K, S_V, S_WQ, S_WO, S_WS = 8, 12, 16, 20, 24
sWAVE, sKVH, sQB, sHSEL, sTSEL = 28, 29, 30, 31, 32
sKOFF, sVOFF, sLOOP, sC, sTHR, sW4K = 33, 34, 35, 36, 37, 38
sT0, sT1, sT2, sT3 = 40, 41, 42, 43

vLANE = 1
vKB = 2
vVB = 10
vKD = 14
vVD = 18
vM, vL, vS0, vS1 = 20, 21, 22, 23
vT = 24
vS = [40, 56]
vP = [72, 80]
vKF = 88
vVF = 104
vH = 128
vO = 128
aQACC = 0
aQ = 128

LDS_V = 65536
LDS_EX = 98304
THRESH = 0x5f800000
MBIAS = 0x42400000

STAMP = False
EXP = set()
WS_STAMP = 60 << 20

class LQ:
    def __init__(self, a):
        self.a = a
        self.q = []
    def issue(self, tag, n=1):
        for _ in range(n): self.q.append(tag)
    def has(self, tag):
        return tag in self.q
    def need(self, tags):
        idx = -1
        for i, t in enumerate(self.q):
            if t in tags: idx = i
        if idx < 0: return False
        n = len(self.q) - 1 - idx
        assert n <= 15, n
        self.a(f"s_waitcnt lgkmcnt({n})")
        self.q = self.q[idx+1:]
        return True

def mfma(d, A, B, C):
    return f"v_mfma_f32_32x32x16_bf16 {d}, {A}, {B}, {C}"

def stamp(a, idx):
    if not STAMP: return
    a("s_memtime s[60:61]" if idx < 100 else "s_memrealtime s[60:61]")
    idx = idx % 100
    a("s_waitcnt lgkmcnt(0)")
    a("v_mov_b32 v118, s60")
    a("v_mov_b32 v119, s61")
    a(f"s_lshl_b32 s62, s2, 9")
    a(f"s_lshl_b32 s63, s{sWAVE}, 7")
    a(f"s_add_u32 s62, s62, s63")
    a(f"s_add_u32 s62, s62, {WS_STAMP + idx*8}")
    a("v_mov_b32 v127, 0")
    a(f"buffer_store_dwordx2 v[118:119], v127, s[{S_WS}:{S_WS+3}], s62 offen")

def lane_fields(a):
    a(f"v_and_b32 v{vLANE}, 63, v0")
    a(f"v_lshrrev_b32 v120, 5, v{vLANE}")
    a(f"v_bfe_u32 v121, v{vLANE}, 2, 2")
    a(f"v_and_b32 v122, 3, v{vLANE}")
    a(f"v_bfe_u32 v123, v{vLANE}, 4, 1")
    a(f"v_and_b32 v124, 31, v{vLANE}")

def tr_base(a, dst, rowmul_h, pitch, dl, add):
    a(f"v_mul_u32_u24 v126, {rowmul_h}, v120")
    a(f"v_add_u32 v126, v126, v121")
    a(f"v_mul_u32_u24 v126, {pitch}, v126")
    a(f"v_xor_b32 v127, {dl}, v121")
    a(f"v_lshlrev_b32 v127, 6, v127")
    a(f"v_add_u32 v126, v126, v127")
    a(f"v_lshlrev_b32 v127, 5, v123")
    a(f"v_add_u32 v126, v126, v127")
    a(f"v_lshlrev_b32 v127, 3, v122")
    a(f"v_add_u32 v126, v126, v127")
    a(f"v_add_u32 v{dst}, {add}, v126")

def softmax_stream(sb, pb):
    S = vS[sb]; P = vP[pb]
    out = []
    pend = []
    for i in range(8):
        ta = vT + 2*(i % 3); tb = ta + 1
        cur = [f"v_cvt_pk_bf16_f32 v{ta}, 0, v{S+2*i}",
               f"v_cvt_pk_bf16_f32 v{tb}, 0, v{S+2*i+1}",
               f"v_fma_f32 v{ta}, v{ta}, s{sC}, -v{vM}",
               f"v_fma_f32 v{tb}, v{tb}, s{sC}, -v{vM}",
               f"v_exp_f32 v{ta}, v{ta}",
               f"v_exp_f32 v{tb}, v{tb}"]
        out.append(cur[0])
        out += pend
        out += cur[1:]
        if i == 0:
            pend = [f"v_add_f32 v{vS0}, v{ta}, v{tb}"]
        elif i == 1:
            pend = [f"v_add_f32 v{vS1}, v{ta}, v{tb}"]
        else:
            pend = [f"v_add_f32 v{vS0}, v{vS0}, v{ta}", f"v_add_f32 v{vS1}, v{vS1}, v{tb}"]
        pend.append(f"v_cvt_pk_bf16_f32 v{P+i}, v{ta}, v{tb}")
    out.append("s_nop 0")
    out += pend
    out.append(f"v_add_f32 v{vS0}, v{vS0}, v{vS1}")
    return out

def cost(ins):
    if ins.startswith("v_exp"): return 8
    return 4

def stream_gemm(a, lq, groups, dma_of_group, nbuf_frag, frag_base, PD=5, ndma_per=4, dma_every=2, pre_issued=3):
    G = len(groups)
    flat = []
    for g, grp in enumerate(groups):
        for it in grp: flat.append((g, it))
    N = len(flat)
    next_rd = 0
    def issue_reads(upto, gmax):
        nonlocal next_rd
        while next_rd < N and next_rd <= upto and flat[next_rd][0] <= gmax:
            g, (reads, mf) = flat[next_rd]
            fb = frag_base + 4*(next_rd % nbuf_frag)
            n = 0
            for fn in reads: n += fn(fb)
            lq.issue(('s', next_rd), n)
            next_rd += 1
    pos = 0
    for g, grp in enumerate(groups):
        issued = min(g + pre_issued, G)
        need = min(g + 1, G - 1)
        if 'sg_nodma' not in EXP: a(f"s_waitcnt vmcnt({ndma_per*(issued - need - 1)})")
        if 'sg_nobar' not in EXP: a("s_barrier")
        fill = dma_of_group(g + pre_issued) if g + pre_issued < G else []
        if 'sg_nodma' in EXP: fill = []
        issue_reads(pos + PD - 1, g + 1)
        for k, (reads, mf) in enumerate(grp):
            fb = frag_base + 4*(pos % nbuf_frag)
            if lq.has(('s', pos)):
                lq.need({('s', pos), ('s', pos+1)} if lq.has(('s', pos+1)) and (pos % 2 == 0) else {('s', pos)})
            a(mf(fb))
            pos += 1
            issue_reads(min(pos + PD - 1, pos + nbuf_frag - 1), g + 1)
            if k % dma_every == 0:
                while fill:
                    x = fill.pop(0); a(x)
                    if not x.startswith("s_"): break
        for x in fill: a(x)

def gen_attn(a, name):
    kernel_header(a, name)
    L_end = a.newlabel("Lat_end")
    a("s_cmp_ge_u32 s2, 256")
    a(f"s_cbranch_scc1 {L_end}")
    a(f"s_load_dwordx4 s[44:47], s[0:1], {KA['k']}")
    a(f"s_load_dwordx4 s[48:51], s[0:1], {KA['wq']}")
    a(f"s_load_dwordx2 s[52:53], s[0:1], {KA['ws']}")
    a("v_lshrrev_b32 v2, 6, v0")
    a("s_nop 0")
    a(f"v_readfirstlane_b32 s{sWAVE}, v2")
    a(f"s_and_b32 s{sKVH}, s2, 7")
    a(f"s_lshr_b32 s{sQB}, s2, 3")
    a("s_waitcnt lgkmcnt(0)")
    make_srd(a, S_K, 44, SZ['k'])
    make_srd(a, S_V, 46, SZ['v'])
    make_srd(a, S_WQ, 48, SZ['wq'])
    make_srd(a, S_WO, 50, SZ['wo'])
    make_srd(a, S_WS, 52, 64 << 20)
    a(f"s_lshr_b32 s{sHSEL}, s{sWAVE}, 1")
    a(f"s_and_b32 s{sTSEL}, s{sWAVE}, 1")
    a(f"s_lshl_b32 s{sW4K}, s{sWAVE}, 12")
    a(f"s_mov_b32 s{sC}, 0x3db8aa3b")
    a(f"s_mov_b32 s{sTHR}, {THRESH:#x}")
    stamp(a, 0); stamp(a, 108)
    lane_fields(a)
    if 'nowarm' not in EXP:
        a(f"s_mul_i32 s{sT0}, s{sQB}, 14")
        a(f"s_lshl_b32 s{sT1}, s{sWAVE}, 2")
        a(f"s_add_u32 s{sT0}, s{sT0}, s{sT1}")
        a(f"s_lshl_b32 s{sT0}, s{sT0}, 13")
        a(f"s_lshl_b32 s{sT1}, s{sKVH}, 10")
        a(f"s_add_u32 s{sT0}, s{sT0}, s{sT1}")
        a(f"v_lshlrev_b32 v126, 4, v{vLANE}")
        for i in range(4):
            a(f"buffer_load_dwordx4 v[{240+4*i}:{243+4*i}], v126, s[{S_WQ}:{S_WQ+3}], s{sT0} offen")
            a(f"s_add_u32 s{sT0}, s{sT0}, 8192")
    vWQD = 112
    for jp in range(2):
        a(f"v_add_u32 v126, {2*jp}, v120")
        a(f"v_and_b32 v126, 3, v126")
        a(f"v_lshlrev_b32 v126, 2, v126")
        a(f"v_xor_b32 v126, v126, v124")
        a(f"v_lshlrev_b32 v126, 4, v126")
        a(f"v_lshlrev_b32 v127, 13, v120")
        a(f"v_add_u32 v{vWQD+jp}, v126, v127")
    a(f"s_lshl_b32 s{sT2}, s{sKVH}, 10")
    a(f"s_lshl_b32 s{sT3}, s{sWAVE}, 16")
    a(f"s_add_u32 s{sT2}, s{sT2}, s{sT3}")
    sMA, sMB, sHB = 54, 55, 56
    def wq_dma(mreg, madd=0):
        out = []
        for hs in range(2):
            for jj in range(4):
                out.append(f"s_add_u32 m0, s{mreg}, {madd + hs*65536 + jj*1024}")
                out.append(f"s_add_u32 s{sT3}, s{sT2}, {jj*16384 + hs*512}")
                out.append(f"buffer_load_dwordx4 v{vWQD + (jj&1)}, s[{S_WQ}:{S_WQ+3}], s{sT3} offen lds")
        out.append(f"s_add_u32 s{sT2}, s{sT2}, {32*8192 if 'wq_lin' not in EXP else 1024}")
        if 'qp_nodma' in EXP and mreg != sW4K: out = []
        return out
    vHO = 111
    a(f"v_lshlrev_b32 v{vHO}, 4, v{vLANE}")
    a(f"s_lshl_b32 s{sT0}, s{sQB}, 1")
    a(f"s_add_u32 s{sT0}, s{sT0}, s{sTSEL}")
    a(f"s_mul_i32 s{sHB}, s{sT0}, {28*1024}")
    a(f"s_add_u32 s{sHB}, s{sHB}, {WS_H1}")
    def b_load(gp):
        return [f"buffer_load_dwordx4 v[{vH+8*gp}:{vH+8*gp+3}], v{vHO}, s[{S_WS}:{S_WS+3}], s{sHB} offen",
                f"buffer_load_dwordx4 v[{vH+8*gp+4}:{vH+8*gp+7}], v{vHO}, s[{S_WS}:{S_WS+3}], s{sHB} offen offset:1024",
                f"s_add_u32 s{sHB}, s{sHB}, 2048"]
    for x in wq_dma(sW4K, 0): a(x)
    for x in wq_dma(sW4K, 16384): a(x)
    for x in b_load(0): a(x)
    for x in wq_dma(sW4K, 32768): a(x)
    for x in b_load(1): a(x)
    a(f"s_add_u32 s{sMA}, s{sW4K}, {32768+16384}")
    a(f"s_mov_b32 s{sMB}, s{sW4K}")
    vQB = 114
    a(f"s_lshl_b32 s{sT1}, s{sHSEL}, 16")
    for dl in range(4):
        tr_base(a, vQB+dl, 8, 512, dl, f"s{sT1}")
    for r in range(128):
        a(f"v_accvgpr_write_b32 a{aQACC+r}, 0")
    lq = LQ(a)
    groups = []
    for gp in range(2):
        grp = []
        slot = gp * 16384
        for ks in range(2):
            for dt in range(8):
                off = slot + ks*8192 + (dt >> 2)*256
                def rd(fb, off=off, dt=dt):
                    a(f"ds_read_b64_tr_b16 v[{fb}:{fb+1}], v{vQB + (dt&3)} offset:{off}")
                    a(f"ds_read_b64_tr_b16 v[{fb+2}:{fb+3}], v{vQB + (dt&3)} offset:{off+2048}")
                    return 2
                def mf(fb, dt=dt, b=vH+8*gp+4*ks):
                    acc = f"a[{aQACC+16*dt}:{aQACC+16*dt+15}]"
                    return mfma(acc, f"v[{fb}:{fb+3}]", f"v[{b}:{b+3}]", acc)
                grp.append(([rd], mf))
        groups.append(grp)
    stream_loop(a, lq, 7, groups, lambda gp: wq_dma(sMA if gp == 0 else sMB), b_load,
                [f"v_xor_b32 v{vQB+dl}, 32768, v{vQB+dl}" for dl in range(4)],
                [f"s_xor_b32 s{sMA}, s{sMA}, 32768", f"s_xor_b32 s{sMB}, s{sMB}, 32768"],
                10, 8, 40, sLOOP, PD=6, dma_every=2, pre_wait=20, label="Lqp", hook=lambda: stamp(a, 7))
    a("s_waitcnt vmcnt(0)")
    a("s_barrier")
    stamp(a, 1)
    a("v_and_b32 v125, 15, v124")
    a(f"v_lshlrev_b32 v127, 9, v124")
    for sl in range(8):
        a(f"v_add_u32 v126, {2*sl}, v120")
        a(f"v_xor_b32 v126, v126, v125")
        a(f"v_lshl_add_u32 v{vKB+sl}, v126, 4, v127")
    a(f"s_lshl_b32 s{sT0}, s{sWAVE}, 3")
    a(f"v_add_u32 v125, s{sT0}, v120")
    a(f"v_lshlrev_b32 v127, 9, v125")
    for j in range(4):
        a(f"v_add_u32 v126, {2*j}, v125")
        a(f"v_and_b32 v126, 15, v126")
        a(f"v_xor_b32 v126, v126, v124")
        a(f"v_lshl_add_u32 v{vKD+j}, v126, 4, v127")
    for jp in range(2):
        a(f"v_add_u32 v126, {2*jp}, v120")
        a(f"v_and_b32 v126, 3, v126")
        a(f"v_lshlrev_b32 v126, 2, v126")
        a(f"v_xor_b32 v126, v126, v124")
        a(f"v_lshl_add_u32 v{vVD+jp}, v126, 4, v127")
    a(f"s_lshl_b32 s{sKOFF}, s{sKVH}, 20")
    a(f"s_lshl_b32 s{sVOFF}, s{sKVH}, 20")
    def k_dma_list(slot):
        out = [f"s_add_u32 m0, s{sW4K}, {slot*16384}"]
        for j in range(4):
            out.append(f"buffer_load_dwordx4 v{vKD+j}, s[{S_K}:{S_K+3}], s{sKOFF} offen offset:{j*1024} lds")
        out.append(f"s_add_u32 s{sKOFF}, s{sKOFF}, 16384")
        return out
    def v_dma_list(slot):
        out = [f"s_add_u32 m0, s{sW4K}, {LDS_V + slot*16384}"]
        for j in range(4):
            out.append(f"buffer_load_dwordx4 v{vVD+(j&1)}, s[{S_V}:{S_V+3}], s{sVOFF} offen offset:{j*1024} lds")
        out.append(f"s_add_u32 s{sVOFF}, s{sVOFF}, 16384")
        return out
    def emit_dma(lst):
        for i, l in enumerate(lst):
            a(l)
            if i == 0: a("s_nop 0")
    emit_dma(k_dma_list(0)); emit_dma(k_dma_list(1)); emit_dma(v_dma_list(0)); emit_dma(k_dma_list(2)); emit_dma(v_dma_list(1))
    for dl in range(4):
        tr_base(a, vVB+dl, 4, 512, dl, LDS_V)
    for dt in range(8):
        for u in range(2):
            tb = vT + 8*((dt*2+u) % 2)
            for g in range(2):
                base = aQACC + 16*dt + 4*(2*u+g)
                for e in range(4):
                    a(f"v_accvgpr_read_b32 v{vS[0]+8*g+e}, a{base+e}")
            a(f"v_cvt_pk_bf16_f32 v{tb}, v{vS[0]}, v{vS[0]+1}")
            a(f"v_cvt_pk_bf16_f32 v{tb+1}, v{vS[0]+2}, v{vS[0]+3}")
            a(f"v_cvt_pk_bf16_f32 v{tb+2}, v{vS[0]+8}, v{vS[0]+9}")
            a(f"v_cvt_pk_bf16_f32 v{tb+3}, v{vS[0]+10}, v{vS[0]+11}")
            a("s_nop 1")
            a(f"v_permlane32_swap_b32 v{tb}, v{tb+2}")
            a(f"v_permlane32_swap_b32 v{tb+1}, v{tb+3}")
            a("s_nop 0")
            for e in range(4):
                a(f"v_accvgpr_write_b32 a{aQ + (dt*2+u)*4 + e}, v{tb+e}")
    for r in range(128):
        a(f"v_mov_b32 v{vO+r}, 0")
    for r in range(8):
        a(f"v_mov_b32 v{vP[1]+r}, 0")
    a(f"v_mov_b32 v{vM}, 0xff800000")
    a(f"v_mov_b32 v{vL}, 0")

    slow_paths = []
    def k_read(kslot, s, fb):
        a(f"ds_read_b128 v[{fb}:{fb+3}], v{vKB + (s&7)} offset:{kslot*16384 + (s>>3)*256}")
    def v_read(vslot, j, fb):
        ks, dt = j // 8, j % 8
        off = vslot*16384 + ks*8192 + (dt >> 2)*256
        a(f"ds_read_b64_tr_b16 v[{fb}:{fb+1}], v{vVB + (dt&3)} offset:{off}")
        a(f"ds_read_b64_tr_b16 v[{fb+2}:{fb+3}], v{vVB + (dt&3)} offset:{off+4096}")

    VPRE = 4
    PD = 5
    BUDGET = 24

    def body(t, do_qk, do_pv, do_sm, next_pv, vm_wait, dma_k, dma_v, pre=VPRE):
        par = t & 1
        kslot = (t+1) % 4
        vslot = (t-1) % 4
        nvslot = t % 4
        Sn = vS[1-par]
        Pp = vP[1-par]
        if vm_wait is not None:
            a(f"s_waitcnt vmcnt({vm_wait})")
            if 'nobar' not in EXP: a("s_barrier")
        if do_qk and do_pv:
            order = ['P']*4 + ['Q','Q','P']*8 + ['P']*4
        elif do_qk:
            order = ['Q']*16
        else:
            order = ['P']*16
        qi = pi = 0
        seq = []
        for o in order:
            if o == 'Q': seq.append(('Q', qi)); qi += 1
            else: seq.append(('P', pi)); pi += 1
        nm = len(seq)
        ext = seq + ([('N', j) for j in range(VPRE)] if next_pv else [])
        fill = []
        if dma_k is not None and 'nodma' not in EXP: fill += k_dma_list(dma_k)
        if dma_v is not None and 'nodma' not in EXP: fill += v_dma_list(dma_v)
        sm = softmax_stream(par, par) if do_sm else []
        if 'nosm' in EXP: sm = sm[-1:]
        issued = set()
        if do_pv:
            for j in range(pre): issued.add(('P', j))
        done_m = set()
        def buf_free(ty, idx):
            if ty == 'Q': return idx < 4 or ('Q', idx-4) in done_m
            if ty == 'P': return idx < 4 or ('P', idx-4) in done_m
            return (not do_pv) or ('P', 12+idx) in done_m
        def issue_reads(upto):
            c = 0
            for p in range(min(upto+1, len(ext))):
                it = ext[p]
                if it in issued: continue
                ty, idx = it
                if not buf_free(ty, idx): break
                if ty == 'Q':
                    k_read(kslot, idx, vKF + 4*(idx % 4)); lq.issue(('K', idx)); c += 4
                elif ty == 'P':
                    v_read(vslot, idx, vVF + 4*(idx % 4)); lq.issue(('V', idx), 2); c += 8
                else:
                    v_read(nvslot, idx, vVF + 4*(idx % 4)); lq.issue(('V', idx), 2); c += 8
                issued.add(it)
            return c
        tagof = lambda it: ('K', it[1]) if it[0] == 'Q' else ('V', it[1])
        issue_reads(PD + 1 if do_pv else PD)
        smi = 0
        total_sm = sum(cost(x) for x in sm)
        sm_done = 0
        ndma = sum(1 for x in fill if not x.startswith("s_"))
        dma_gaps = set()
        if ndma:
            step = (nm - 4) / ndma
            dma_gaps = {int(1 + i*step) for i in range(ndma)}
        for n, it in enumerate(seq):
            ty, idx = it
            used = 0
            tg = tagof(it)
            if lq.has(tg):
                tags = {tg}
                if n + 1 < nm and lq.has(tagof(seq[n+1])) and n % 2 == 0: tags.add(tagof(seq[n+1]))
                lq.need(tags)
            if ty == 'Q':
                fb = vKF + 4*(idx % 4)
                C = "0" if idx == 0 else f"v[{Sn}:{Sn+15}]"
                a(mfma(f"v[{Sn}:{Sn+15}]", f"v[{fb}:{fb+3}]", f"a[{aQ+4*idx}:{aQ+4*idx+3}]", C))
            else:
                fb = vVF + 4*(idx % 4)
                ks, dt = idx // 8, idx % 8
                o = f"v[{vO+16*dt}:{vO+16*dt+15}]"
                a(mfma(o, f"v[{fb}:{fb+3}]", f"v[{Pp+4*ks}:{Pp+4*ks+3}]", o))
            done_m.add(it)
            used += issue_reads(n + PD)
            if n in dma_gaps:
                while fill:
                    x = fill.pop(0); a(x); used += 4
                    if x.startswith("s_add_u32 m0"):
                        if smi < len(sm): a(sm[smi]); sm_done += cost(sm[smi]); used += cost(sm[smi]); smi += 1
                        else: a("s_nop 0")
                    if not x.startswith("s_"): break
            tgt = total_sm * (n+1) / max(nm - 3, 1)
            while smi < len(sm) and (sm_done < tgt) and (used + cost(sm[smi]) <= BUDGET or sm_done < tgt - 24):
                a(sm[smi]); sm_done += cost(sm[smi]); used += cost(sm[smi]); smi += 1
        for x in fill:
            a(x)
            if x.startswith("s_add_u32 m0"): a("s_nop 0")
        while smi < len(sm):
            a(sm[smi]); smi += 1
        issue_reads(len(ext))
        assert all(e in issued for e in ext), (t, [e for e in ext if e not in issued])
        if do_sm:
            Ls = a.newlabel("Lslow"); Lr = a.newlabel("Lret")
            a(f"v_cmp_lt_f32 vcc, s{sTHR}, v{vS0}")
            a("s_nop 1")
            a(f"s_cbranch_vccnz {Ls}")
            a.label(Lr)
            a(f"v_add_f32 v{vL}, v{vL}, v{vS0}")
            slow_paths.append((Ls, Lr, par))

    stamp(a, 2)
    a("s_waitcnt vmcnt(16)")
    a("s_barrier")
    body(-1, True, False, False, True, None, None, None)
    a("s_nop 7")
    Lloop = a.newlabel("Lloop")
    a(f"s_mov_b32 s{sLOOP}, 0")
    a.raw(".p2align 3")
    a.label(Lloop)
    q0 = list(lq.q)
    for t in (0, 1, 2, 3):
        body(t, True, True, True, True, 8, (t+3) % 4, (t+2) % 4)
    assert q0 == lq.q, (q0, lq.q)
    a(f"s_add_u32 s{sLOOP}, s{sLOOP}, 1")
    a(f"s_cmp_lt_u32 s{sLOOP}, 16")
    a(f"s_cbranch_scc1 {Lloop}")
    body(64, False, True, False, False, None, None, None)
    a("s_waitcnt vmcnt(0)")
    a("s_barrier")
    stamp(a, 3)
    vWOD = 2
    for rr in range(4):
        a(f"v_xor_b32 v126, {rr<<2}, v{vLANE}")
        a(f"v_lshlrev_b32 v{vWOD+rr}, 4, v126")
    a(f"s_lshl_b32 s{sT2}, s{sKVH}, 9")
    a(f"s_lshl_b32 s{sT3}, s{sWAVE}, 3")
    a(f"s_add_u32 s{sT2}, s{sT2}, s{sT3}")
    a(f"s_mul_i32 s{sT2}, s{sT2}, 896")
    a(f"s_lshl_b32 s{sT1}, s{sWAVE}, 13")
    def wo_dma(g):
        out = []
        for rr in range(8):
            out.append(f"s_add_u32 m0, s{sT1}, {(g%4)*32768 + rr*1024}")
            out.append(f"s_add_u32 s{sT3}, s{sT2}, {g*32*896 + rr*896}")
            out.append(f"buffer_load_dwordx4 v{vWOD+(rr&3)}, s[{S_WO}:{S_WO+3}], s{sT3} offen lds")
        return out
    for g in range(3):
        for x in wo_dma(g): a(x)
    a(f"v_mov_b32 v{vT}, v{vL}")
    a("s_nop 1")
    a(f"v_permlane32_swap_b32 v{vL}, v{vT}")
    a("s_nop 1")
    a(f"v_add_f32 v{vL}, v{vL}, v{vT}")
    a(f"v_rcp_f32 v{vL}, v{vL}")
    a(f"v_lshlrev_b32 v6, 4, v{vLANE}")
    a(f"s_lshl_b32 s{sT0}, s{sWAVE}, 14")
    a(f"s_add_u32 s{sT0}, s{sT0}, {LDS_EX}")
    a(f"v_add_u32 v6, s{sT0}, v6")
    for i in range(16):
        tb = 40 + 4*(i % 8)
        for e in range(8):
            a(f"v_mul_f32 v{vO+8*i+e}, v{vO+8*i+e}, v{vL}")
        for e in range(4):
            a(f"v_cvt_pk_bf16_f32 v{tb+e}, v{vO+8*i+2*e}, v{vO+8*i+2*e+1}")
        a(f"ds_write_b128 v6, v[{tb}:{tb+3}] offset:{i*1024}")
    a("s_waitcnt lgkmcnt(0)")
    a("s_barrier")
    a(f"v_lshlrev_b32 v6, 4, v{vLANE}")
    a(f"s_lshl_b32 s{sT0}, s{sTSEL}, 14")
    a(f"s_add_u32 s{sT0}, s{sT0}, {LDS_EX}")
    a(f"v_add_u32 v6, s{sT0}, v6")
    for hs in range(2):
        for i in range(16):
            a(f"ds_read_b128 a[{64*hs+4*i}:{64*hs+4*i+3}], v6 offset:{hs*32768 + i*1024}")
        a("s_waitcnt lgkmcnt(0)")
    vOB = 8
    a(f"s_mul_i32 s{sT0}, s{sHSEL}, 7")
    a(f"v_lshl_add_u32 v126, v120, 2, v121")
    a(f"v_lshlrev_b32 v126, 10, v126")
    a(f"v_lshl_add_u32 v126, v123, 5, v126")
    a(f"v_lshl_add_u32 v126, v122, 3, v126")
    for i in range(7):
        a(f"s_add_u32 s{sT3}, s{sT0}, {i}")
        a(f"v_xor_b32 v125, s{sT3}, v121")
        a(f"v_lshl_add_u32 v{vOB+i}, v125, 6, v126")
        a(f"v_add_u32 v{vOB+7+i}, 65536, v{vOB+i}")
    stamp(a, 4)
    lq.q = []
    groups = []
    for g in range(16):
        grp = []
        slot = (g % 4) * 32768
        bsel = 7 if slot >= 65536 else 0
        so = slot % 65536
        for ks in range(2):
            for i in range(7):
                def rd(fb, i=i, off=so + ks*16384, bsel=bsel):
                    a(f"ds_read_b64_tr_b16 v[{fb}:{fb+1}], v{vOB+bsel+i} offset:{off}")
                    a(f"ds_read_b64_tr_b16 v[{fb+2}:{fb+3}], v{vOB+bsel+i} offset:{off+8192}")
                    return 2
                j = g*2 + ks
                def mf(fb, i=i, j=j):
                    acc = f"v[{vO+16*i}:{vO+16*i+15}]"
                    return mfma(acc, f"v[{fb}:{fb+3}]", f"a[{4*j}:{4*j+3}]", "0" if j == 0 else acc)
                grp.append(([rd], mf))
        groups.append(grp)
    stream_gemm(a, lq, groups, wo_dma, 6, 40, PD=5, ndma_per=8, dma_every=1)
    a(f"s_lshl_b32 s{sT0}, s{sQB}, 6")
    a(f"s_lshl_b32 s{sT1}, s{sTSEL}, 5")
    a(f"s_add_u32 s{sT0}, s{sT0}, s{sT1}")
    a(f"s_lshl_b32 s{sT1}, s{sKVH}, 11")
    a(f"s_add_u32 s{sT0}, s{sT0}, s{sT1}")
    a(f"v_add_u32 v6, s{sT0}, v124")
    a(f"s_mov_b32 s{sT1}, 1792")
    a(f"v_mul_lo_u32 v6, v6, s{sT1}")
    a(f"v_lshlrev_b32 v7, 4, v120")
    a(f"v_add_u32 v6, v6, v7")
    a(f"s_mul_i32 s{sT1}, s{sHSEL}, 896")
    a(f"s_add_u32 s{sT1}, s{sT1}, {WS_PART}")
    a("s_nop 7")
    a("s_nop 7")
    for i in range(7):
        for q in range(4):
            r0 = vO + 16*i + 4*q
            a(f"buffer_store_dwordx4 v[{r0}:{r0+3}], v6, s[{S_WS}:{S_WS+3}], s{sT1} offen offset:{i*128+q*32}")
    stamp(a, 5)
    a("s_waitcnt vmcnt(0)")
    stamp(a, 6); stamp(a, 109)
    a("s_waitcnt vmcnt(0)")
    a.label(L_end)
    a("s_endpgm")
    for (Ls, Lr, par) in slow_paths:
        S = vS[par]
        a.label(Ls)
        a(f"v_max3_f32 v{vT}, v{S}, v{S+1}, v{S+2}")
        for i in range(3, 15, 2):
            a(f"v_max3_f32 v{vT}, v{vT}, v{S+i}, v{S+i+1}")
        a(f"v_max_f32 v{vT}, v{vT}, v{S+15}")
        a(f"v_mov_b32 v{vT+1}, v{vT}")
        a("s_nop 1")
        a(f"v_permlane32_swap_b32 v{vT}, v{vT+1}")
        a("s_nop 1")
        a(f"v_max_f32 v{vT}, v{vT}, v{vT+1}")
        a(f"v_cvt_pk_bf16_f32 v{vT}, 0, v{vT}")
        a(f"v_mov_b32 v{vT+2}, {MBIAS:#x}")
        a(f"v_fma_f32 v{vT}, v{vT}, s{sC}, v{vT+2}")
        a(f"v_max_f32 v{vT}, v{vT}, v{vM}")
        a(f"v_sub_f32 v{vT+1}, v{vM}, v{vT}")
        a(f"v_exp_f32 v{vT+1}, v{vT+1}")
        a(f"v_mov_b32 v{vM}, v{vT}")
        a("s_nop 7")
        a("s_nop 7")
        a(f"v_mul_f32 v{vL}, v{vL}, v{vT+1}")
        for r in range(128):
            a(f"v_mul_f32 v{vO+r}, v{vO+r}, v{vT+1}")
        for x in softmax_stream(par, par):
            a(x)
        a("s_nop 1")
        a(f"s_branch {Lr}")
    return kernel_desc(name, 256+192, 256)
```

```python
from asmlib import *
from k_attn import LQ, mfma, lane_fields, tr_base
from stream import stream_loop

import k_attn
def fstamp(a, idx, srd, base):
    if 'fstamp' not in k_attn.EXP: return
    a("s_memtime s[60:61]")
    a("s_waitcnt lgkmcnt(0)")
    a("v_mov_b32 v118, s60")
    a("v_mov_b32 v119, s61")
    a(f"s_lshl_b32 s62, s2, 9")
    a(f"s_lshl_b32 s63, s28, 7")
    a(f"s_add_u32 s62, s62, s63")
    a(f"s_add_u32 s62, s62, {base + idx*8}")
    a("v_mov_b32 v127, 0")
    a(f"buffer_store_dwordx2 v[118:119], v127, s[{srd}:{srd+3}], s62 offen")

def gen_gateup(a, name):
    S_G, S_U, S_WS = 8, 12, 16
    sWAVE, sTB, sFS, sFH, sTSEL, sW4K = 28, 29, 30, 31, 32, 33
    sT0, sT1, sT2, sT3 = 40, 41, 42, 43
    vH = 128
    kernel_header(a, name)
    L_end = a.newlabel("Lgu_end")
    a("s_cmp_ge_u32 s2, 224")
    a(f"s_cbranch_scc1 {L_end}")
    a(f"s_load_dwordx4 s[44:47], s[0:1], {KA['wg']}")
    a(f"s_load_dwordx2 s[52:53], s[0:1], {KA['ws']}")
    a("v_lshrrev_b32 v2, 6, v0")
    a("s_nop 0")
    a(f"v_readfirstlane_b32 s{sWAVE}, v2")
    a(f"s_and_b32 s{sTB}, s2, 31")
    a(f"s_lshr_b32 s{sFS}, s2, 5")
    a("s_waitcnt lgkmcnt(0)")
    make_srd(a, S_G, 44, SZ['wg'])
    make_srd(a, S_U, 46, SZ['wu'])
    make_srd(a, S_WS, 52, 64 << 20)
    a(f"s_lshr_b32 s{sFH}, s{sWAVE}, 1")
    a(f"s_and_b32 s{sTSEL}, s{sWAVE}, 1")
    a(f"s_lshl_b32 s{sW4K}, s{sWAVE}, 12")
    fstamp(a, 0, S_WS, 58<<20)
    lane_fields(a)
    vWD = 112
    for jp in range(2):
        a(f"v_add_u32 v126, {2*jp}, v120")
        a(f"v_and_b32 v126, 3, v126")
        a(f"v_lshlrev_b32 v126, 2, v126")
        a(f"v_xor_b32 v126, v126, v124")
        a(f"v_lshlrev_b32 v126, 4, v126")
        a(f"v_mul_u32_u24 v127, 3584, v120")
        a(f"v_add_u32 v{vWD+jp}, v126, v127")
    a(f"s_lshl_b32 s{sT2}, s{sFS}, 9")
    a(f"s_mul_i32 s{sT3}, s{sWAVE}, {8*3584}")
    a(f"s_add_u32 s{sT2}, s{sT2}, s{sT3}")
    sMA, sMB, sHB, sLOOP = 54, 55, 56, 35
    def dma(mreg, madd=0):
        out = []
        for gu in range(2):
            srd = S_G if gu == 0 else S_U
            for jj in range(4):
                out.append(f"s_add_u32 m0, s{mreg}, {madd + gu*65536 + jj*1024}")
                out.append(f"s_add_u32 s{sT3}, s{sT2}, {jj*2*3584}")
                out.append(f"buffer_load_dwordx4 v{vWD + (jj&1)}, s[{srd}:{srd+3}], s{sT3} offen lds")
        out.append(f"s_add_u32 s{sT2}, s{sT2}, {32*3584}")
        return out
    a(f"s_lshl_b32 s{sT0}, s{sTB}, 6")
    a(f"s_lshl_b32 s{sT1}, s{sTSEL}, 5")
    a(f"s_add_u32 s{sT0}, s{sT0}, s{sT1}")
    a(f"v_add_u32 v110, s{sT0}, v124")
    a(f"v_lshlrev_b32 v111, 4, v1")
    a(f"s_lshl_b32 s{sT0}, s{sTB}, 1")
    a(f"s_add_u32 s{sT0}, s{sT0}, s{sTSEL}")
    a(f"s_mul_i32 s{sHB}, s{sT0}, {28*1024}")
    a(f"s_add_u32 s{sHB}, s{sHB}, {WS_H2}")
    def b_load(gp):
        return [f"buffer_load_dwordx4 v[{vH+8*gp}:{vH+8*gp+3}], v111, s[{S_WS}:{S_WS+3}], s{sHB} offen",
                f"buffer_load_dwordx4 v[{vH+8*gp+4}:{vH+8*gp+7}], v111, s[{S_WS}:{S_WS+3}], s{sHB} offen offset:1024",
                f"s_add_u32 s{sHB}, s{sHB}, 2048"]
    for x in dma(sW4K, 0): a(x)
    for x in dma(sW4K, 16384): a(x)
    for x in b_load(0): a(x)
    for x in dma(sW4K, 32768): a(x)
    for x in b_load(1): a(x)
    a(f"s_add_u32 s{sMA}, s{sW4K}, {32768+16384}")
    a(f"s_mov_b32 s{sMB}, s{sW4K}")
    vQB = 114
    a(f"s_lshl_b32 s{sT1}, s{sFH}, 8")
    for dl in range(4):
        tr_base(a, vQB+dl, 8, 512, dl, f"s{sT1}")
    for dl in range(4):
        a(f"v_add_u32 v{104+dl}, 65536, v{vQB+dl}")
    for r in range(128):
        a(f"v_accvgpr_write_b32 a{r}, 0")
    lq = LQ(a)
    groups = []
    for gp in range(2):
        grp = []
        slot = gp * 16384
        for ks in range(2):
            for gu in range(2):
                for i in range(4):
                    base = (vQB if gu == 0 else 104) + i
                    off = slot + ks*8192
                    def rd(fb, base=base, off=off):
                        a(f"ds_read_b64_tr_b16 v[{fb}:{fb+1}], v{base} offset:{off}")
                        a(f"ds_read_b64_tr_b16 v[{fb+2}:{fb+3}], v{base} offset:{off+2048}")
                        return 2
                    def mf(fb, gu=gu, i=i, b=vH+8*gp+4*ks):
                        ac = (gu*4 + i)*16
                        acc = f"a[{ac}:{ac+15}]"
                        return mfma(acc, f"v[{fb}:{fb+3}]", f"v[{b}:{b+3}]", acc)
                    grp.append(([rd], mf))
        groups.append(grp)
    stream_loop(a, lq, 7, groups, lambda gp: dma(sMA if gp == 0 else sMB), b_load,
                [f"v_xor_b32 v{vQB+dl}, 32768, v{vQB+dl}" for dl in range(4)] + [f"v_xor_b32 v{104+dl}, 32768, v{104+dl}" for dl in range(4)],
                [f"s_xor_b32 s{sMA}, s{sMA}, 32768", f"s_xor_b32 s{sMB}, s{sMB}, 32768"],
                10, 8, 40, sLOOP, PD=6, dma_every=2, pre_wait=20, label="Lgu", hook=lambda: fstamp(a, 1, S_WS, 58<<20))
    fstamp(a, 2, S_WS, 58<<20)
    a(f"v_mul_u32_u24 v6, 3584, v110")
    a(f"v_lshlrev_b32 v7, 4, v120")
    a(f"v_add_u32 v6, v6, v7")
    a(f"s_lshl_b32 s{sT0}, s{sFS}, 9")
    a(f"s_lshl_b32 s{sT1}, s{sFH}, 8")
    a(f"s_add_u32 s{sT0}, s{sT0}, s{sT1}")
    a(f"s_add_u32 s{sT0}, s{sT0}, {WS_ACT}")
    a("s_nop 7")
    a("s_nop 7")
    for i in range(4):
        for u in range(2):
            ob = 24 + 4*((i*2+u) % 4)
            for g in range(2):
                q = 2*u + g
                for e in range(4):
                    a(f"v_accvgpr_read_b32 v{10+e}, a{i*16+4*q+e}")
                    a(f"v_accvgpr_read_b32 v{14+e}, a{64+i*16+4*q+e}")
                for e in range(4):
                    a(f"v_cvt_pk_bf16_f32 v{10+e}, 0, v{10+e}")
                    a(f"v_cvt_pk_bf16_f32 v{14+e}, 0, v{14+e}")
                for e in range(4):
                    a(f"v_mul_f32 v{18+e}, 0xbfb8aa3b, v{10+e}")
                for e in range(4):
                    a(f"v_exp_f32 v{18+e}, v{18+e}")
                for e in range(4):
                    a(f"v_add_f32 v{18+e}, 1.0, v{18+e}")
                for e in range(4):
                    a(f"v_rcp_f32 v{18+e}, v{18+e}")
                for e in range(4):
                    a(f"v_mul_f32 v{10+e}, v{10+e}, v{18+e}")
                for e in range(4):
                    a(f"v_cvt_pk_bf16_f32 v{10+e}, 0, v{10+e}")
                for e in range(4):
                    a(f"v_mul_f32 v{10+e}, v{10+e}, v{14+e}")
                a(f"v_cvt_pk_bf16_f32 v{ob+2*g}, v10, v11")
                a(f"v_cvt_pk_bf16_f32 v{ob+2*g+1}, v12, v13")
            a("s_nop 1")
            a(f"v_permlane32_swap_b32 v{ob}, v{ob+2}")
            a(f"v_permlane32_swap_b32 v{ob+1}, v{ob+3}")
            a("s_nop 0")
            a(f"buffer_store_dwordx4 v[{ob}:{ob+3}], v6, s[{S_WS}:{S_WS+3}], s{sT0} offen offset:{i*64+u*32}")
    fstamp(a, 3, S_WS, 58<<20)
    a("s_waitcnt vmcnt(0)")
    fstamp(a, 4, S_WS, 58<<20)
    a("s_waitcnt vmcnt(0)")
    a.label(L_end)
    a("s_endpgm")
    return kernel_desc(name, 144+128, 144)

def gen_down(a, name):
    S_D, S_WS, S_OUT = 8, 12, 16
    sWAVE, sTB, sNB, sNS, sTSEL, sW4K = 28, 29, 30, 31, 32, 33
    sT0, sT1, sT2, sT3, sA = 40, 41, 42, 43, 39
    kernel_header(a, name)
    L_end = a.newlabel("Ldn_end")
    a("s_cmp_ge_u32 s2, 224")
    a(f"s_cbranch_scc1 {L_end}")
    a(f"s_load_dwordx2 s[44:45], s[0:1], {KA['wd']}")
    a(f"s_load_dwordx2 s[46:47], s[0:1], {KA['out']}")
    a(f"s_load_dwordx2 s[52:53], s[0:1], {KA['ws']}")
    a("v_lshrrev_b32 v2, 6, v0")
    a("s_nop 0")
    a(f"v_readfirstlane_b32 s{sWAVE}, v2")
    a(f"s_and_b32 s{sTB}, s2, 31")
    a(f"s_lshr_b32 s{sNB}, s2, 5")
    a("s_waitcnt lgkmcnt(0)")
    make_srd(a, S_D, 44, SZ['wd'])
    make_srd(a, S_OUT, 46, SZ['out'])
    make_srd(a, S_WS, 52, 64 << 20)
    a(f"s_lshr_b32 s{sNS}, s{sWAVE}, 1")
    a(f"s_and_b32 s{sTSEL}, s{sWAVE}, 1")
    a(f"s_lshl_b32 s{sW4K}, s{sWAVE}, 12")
    fstamp(a, 0, S_WS, 59<<20)
    lane_fields(a)
    a(f"s_lshl_b32 s{sT0}, s{sTB}, 6")
    a(f"s_lshl_b32 s{sT1}, s{sTSEL}, 5")
    a(f"s_add_u32 s{sT1}, s{sT0}, s{sT1}")
    a(f"v_add_u32 v110, s{sT1}, v124")
    a(f"v_lshrrev_b32 v126, 3, v1")
    a(f"v_bfe_u32 v127, v126, 1, 1")
    a(f"v_lshlrev_b32 v127, 2, v127")
    a(f"v_and_b32 v125, 7, v1")
    a(f"v_xor_b32 v125, v125, v127")
    a(f"v_lshlrev_b32 v125, 4, v125")
    a(f"v_mul_u32_u24 v126, 896, v126")
    a(f"v_add_u32 v112, v125, v126")
    a(f"s_lshl_b32 s{sT2}, s{sNB}, 7")
    a(f"s_mul_i32 s{sT3}, s{sWAVE}, {32*896}")
    a(f"s_add_u32 s{sT2}, s{sT2}, s{sT3}")
    a(f"v_lshrrev_b32 v126, 4, v1")
    a(f"v_and_b32 v125, 15, v1")
    for jj in range(4):
        a(f"v_add_u32 v127, {4*jj}, v126")
        a(f"v_xor_b32 v118, v125, v127")
        a(f"v_lshlrev_b32 v118, 4, v118")
        a(f"v_mul_u32_u24 v127, 3584, v127")
        a(f"v_add_u32 v{114+jj}, v118, v127")
    a(f"s_lshl_b32 s{sA}, s{sWAVE}, 4")
    a(f"s_add_u32 s{sA}, s{sA}, s{sT0}")
    a(f"s_mul_i32 s{sA}, s{sA}, 3584")
    a(f"s_add_u32 s{sA}, s{sA}, {WS_ACT}")
    sMA, sMB, sLOOP = 54, 55, 35
    def dma(mreg, madd=0):
        out = []
        for jj in range(4):
            out.append(f"s_add_u32 m0, s{mreg}, {madd + jj*1024}")
            out.append(f"s_add_u32 s{sT3}, s{sT2}, {jj*8*896}")
            out.append(f"buffer_load_dwordx4 v112, s[{S_D}:{S_D+3}], s{sT3} offen lds")
        for jj in range(4):
            out.append(f"s_add_u32 m0, s{mreg}, {madd + 65536 + jj*1024}")
            out.append(f"s_nop 0")
            out.append(f"buffer_load_dwordx4 v{114+jj}, s[{S_WS}:{S_WS+3}], s{sA} offen lds")
        out.append(f"s_add_u32 s{sT2}, s{sT2}, {128*896}")
        out.append(f"s_add_u32 s{sA}, s{sA}, 256")
        return out
    for t in range(3):
        for x in dma(sW4K, t*16384): a(x)
    a(f"s_add_u32 s{sMA}, s{sW4K}, {32768+16384}")
    a(f"s_mov_b32 s{sMB}, s{sW4K}")
    a(f"v_lshl_add_u32 v126, v120, 3, v121")
    a(f"v_lshlrev_b32 v126, 7, v126")
    a(f"v_bfe_u32 v127, v121, 1, 1")
    a(f"v_xor_b32 v127, s{sNS}, v127")
    a(f"v_lshlrev_b32 v127, 6, v127")
    a(f"v_add_u32 v126, v126, v127")
    a(f"v_lshlrev_b32 v127, 5, v123")
    a(f"v_add_u32 v126, v126, v127")
    a(f"v_lshlrev_b32 v127, 3, v122")
    a(f"v_add_u32 v113, v126, v127")
    a(f"s_lshl_b32 s{sT1}, s{sTSEL}, 13")
    a(f"s_add_u32 s{sT1}, s{sT1}, 65536")
    a(f"v_lshlrev_b32 v127, 8, v124")
    a(f"v_add_u32 v127, s{sT1}, v127")
    a(f"v_and_b32 v125, 15, v124")
    for s in range(8):
        a(f"v_add_u32 v126, {2*s}, v120")
        a(f"v_xor_b32 v126, v126, v125")
        a(f"v_lshl_add_u32 v{100+s}, v126, 4, v127")
    for r in range(16):
        a(f"v_mov_b32 v{80+r}, 0")
    lq = LQ(a)
    groups = []
    for gp in range(2):
        grp = []
        slot = gp*16384
        for s_ in range(8):
            def rd(fb, s_=s_, slot=slot):
                fb2 = fb + 88
                a(f"ds_read_b64_tr_b16 v[{fb}:{fb+1}], v113 offset:{slot + s_*2048}")
                a(f"ds_read_b64_tr_b16 v[{fb+2}:{fb+3}], v113 offset:{slot + s_*2048 + 512}")
                a(f"ds_read_b128 v[{fb2}:{fb2+3}], v{100+s_} offset:{slot}")
                return 3
            def mf(fb):
                fb2 = fb + 88
                return mfma("v[80:95]", f"v[{fb}:{fb+3}]", f"v[{fb2}:{fb2+3}]", "v[80:95]")
            grp.append(([rd], mf))
        groups.append(grp)
    stream_loop(a, lq, 7, groups, lambda gp: dma(sMA if gp == 0 else sMB), lambda gp: [],
                ["v_xor_b32 v113, 32768, v113"] + [f"v_xor_b32 v{100+i}, 32768, v{100+i}" for i in range(8)],
                [f"s_xor_b32 s{sMA}, s{sMA}, 32768", f"s_xor_b32 s{sMB}, s{sMB}, 32768"],
                8, 8, 40, sLOOP, PD=5, dma_every=1, pre_wait=16, label="Ldn", hook=lambda: fstamp(a, 1, S_WS, 59<<20))
    fstamp(a, 2, S_WS, 59<<20)
    a(f"s_lshl_b32 s{sT0}, s{sNB}, 7")
    a(f"s_lshl_b32 s{sT1}, s{sNS}, 6")
    a(f"s_add_u32 s{sT0}, s{sT0}, s{sT1}")
    a(f"v_mul_u32_u24 v6, 896, v110")
    a(f"v_lshlrev_b32 v7, 3, v120")
    a(f"v_add_u32 v8, v6, v7")
    a(f"s_add_u32 s{sT1}, s{sT0}, {WS_X2}")
    a(f"s_add_u32 s{sT2}, s{sT0}, {WS_MOD + 5*896}")
    for q in range(4):
        a(f"buffer_load_dwordx2 v[{10+2*q}:{11+2*q}], v8, s[{S_WS}:{S_WS+3}], s{sT1} offen offset:{q*16}")
        a(f"buffer_load_dwordx2 v[{20+2*q}:{21+2*q}], v7, s[{S_WS}:{S_WS+3}], s{sT2} offen offset:{q*16}")
    a("s_waitcnt vmcnt(0)")
    a("s_nop 7")
    a(f"v_lshlrev_b32 v7, 4, v120")
    a(f"v_add_u32 v6, v6, v7")
    for u in range(2):
        ob = 60 + 4*u
        for g in range(2):
            q = 2*u + g
            for p in range(2):
                f0, f1 = 80+4*q+2*p, 81+4*q+2*p
                a(f"v_cvt_pk_bf16_f32 v31, 0, v{f0}")
                a(f"v_cvt_pk_bf16_f32 v32, 0, v{f1}")
                a(f"v_lshlrev_b32 v33, 16, v{20+2*q+p}")
                a(f"v_and_b32 v34, 0xffff0000, v{20+2*q+p}")
                a(f"v_mul_f32 v31, v31, v33")
                a(f"v_mul_f32 v32, v32, v34")
                a(f"v_cvt_pk_bf16_f32 v31, 0, v31")
                a(f"v_cvt_pk_bf16_f32 v32, 0, v32")
                a(f"v_lshlrev_b32 v33, 16, v{10+2*q+p}")
                a(f"v_and_b32 v34, 0xffff0000, v{10+2*q+p}")
                a(f"v_add_f32 v31, v31, v33")
                a(f"v_add_f32 v32, v32, v34")
                a(f"v_cvt_pk_bf16_f32 v{ob+2*g+p}, v31, v32")
        a("s_nop 1")
        a(f"v_permlane32_swap_b32 v{ob}, v{ob+2}")
        a(f"v_permlane32_swap_b32 v{ob+1}, v{ob+3}")
        a("s_nop 0")
        a(f"buffer_store_dwordx4 v[{ob}:{ob+3}], v6, s[{S_OUT}:{S_OUT+3}], s{sT0} offen offset:{u*32}")
    fstamp(a, 3, S_WS, 59<<20)
    a("s_waitcnt vmcnt(0)")
    fstamp(a, 4, S_WS, 59<<20)
    a("s_waitcnt vmcnt(0)")
    a.label(L_end)
    a("s_endpgm")
    return kernel_desc(name, 168, 168)
```

```python
from asmlib import *

LOG2E = 0x3fb8aa3b

def round_pair(a, va, vb, tmp):
    a(f"v_cvt_pk_bf16_f32 v{tmp}, v{va}, v{vb}")
    a(f"v_lshlrev_b32 v{va}, 16, v{tmp}")
    a(f"v_and_b32 v{vb}, 0xffff0000, v{tmp}")

def round_one(a, va, tmp):
    a(f"v_cvt_pk_bf16_f32 v{tmp}, v{va}, v{va}")
    a(f"v_lshlrev_b32 v{va}, 16, v{tmp}")

def gen_mod(a, name):
    kernel_header(a, name)
    L_end = a.newlabel("Lmod_end")
    a(f"s_cmp_ge_u32 s2, 42")
    a(f"s_cbranch_scc1 {L_end}")
    a(f"s_load_dwordx2 s[4:5], s[0:1], {KA['c']}")
    a(f"s_load_dwordx2 s[6:7], s[0:1], {KA['wmod']}")
    a(f"s_load_dwordx2 s[8:9], s[0:1], {KA['ws']}")
    a("s_waitcnt lgkmcnt(0)")
    make_srd(a, 12, 4, SZ['c'])
    make_srd(a, 16, 6, SZ['wmod'])
    make_srd(a, 20, 8, 2688*2)
    a("v_lshlrev_b32 v1, 1, v0")
    a("buffer_load_ushort v2, v1, s[12:15], 0 offen")
    a("buffer_load_ushort v3, v1, s[12:15], 0 offen offset:512")
    a("s_waitcnt vmcnt(0)")
    for r in (2, 3):
        a(f"v_lshlrev_b32 v{r}, 16, v{r}")
        a(f"v_mul_f32 v4, 0xbfb8aa3b, v{r}")
        a(f"v_exp_f32 v4, v4")
        a("s_nop 0")
        a(f"v_add_f32 v4, 1.0, v4")
        a(f"v_rcp_f32 v4, v4")
        a("s_nop 0")
        a(f"v_mul_f32 v{r}, v{r}, v4")
        round_one(a, r, 4)
    a("v_lshlrev_b32 v1, 2, v0")
    a("ds_write_b32 v1, v2")
    a("ds_write_b32 v1, v3 offset:1024")
    a("s_waitcnt lgkmcnt(0)")
    a("s_barrier")
    a("v_and_b32 v1, 31, v0")
    a("v_lshrrev_b32 v2, 5, v0")
    a("s_lshl_b32 s3, s2, 7")
    a("v_mul_u32_u24 v3, 56*5376, v2") if False else None
    a("s_mov_b32 s24, 301056")
    a("v_mul_lo_u32 v3, v2, s24")
    a("v_lshlrev_b32 v4, 2, v1")
    a("v_add3_u32 v3, v3, v4, s3")
    for kk in range(56):
        a(f"s_mov_b32 s25, {kk*5376}")
        a(f"buffer_load_dword v{32+kk}, v3, s[16:19], s25 offen")
    a("v_mul_u32_u24 v5, 224, v2")
    for q in range(14):
        a(f"ds_read_b128 v[{96+4*q}:{99+4*q}], v5 offset:{16*q}")
    a("v_mov_b32 v6, 0")
    a("v_mov_b32 v7, 0")
    a("s_waitcnt lgkmcnt(0)")
    for kk in range(56):
        a(f"s_waitcnt vmcnt({55-kk})")
        a(f"v_lshlrev_b32 v8, 16, v{32+kk}")
        a(f"v_and_b32 v9, 0xffff0000, v{32+kk}")
        a(f"v_fmac_f32 v6, v8, v{96+kk}")
        a(f"v_fmac_f32 v7, v9, v{96+kk}")
    a("v_lshlrev_b32 v8, 8, v2")
    a("v_lshlrev_b32 v9, 3, v1")
    a("v_add_u32 v8, v8, v9")
    a("ds_write_b64 v8, v[6:7] offset:2048")
    a("s_waitcnt lgkmcnt(0)")
    a("s_barrier")
    a("v_cmp_gt_u32 vcc, 64, v0")
    a("s_and_saveexec_b64 s[26:27], vcc")
    a(f"s_cbranch_execz {L_end}")
    a("v_lshlrev_b32 v1, 2, v0")
    for q in range(8):
        a(f"ds_read_b32 v{10+q}, v1 offset:{2048+q*256}")
    a("s_waitcnt lgkmcnt(0)")
    for q in range(1, 8):
        a(f"v_add_f32 v10, v10, v{10+q}")
    a("v_cvt_pk_bf16_f32 v10, v10, v10")
    a("v_lshlrev_b32 v1, 1, v0")
    a("v_add_u32 v1, s3, v1")
    a("buffer_store_short v10, v1, s[20:23], 0 offen")
    a("s_waitcnt vmcnt(0)")
    a.label(L_end)
    a("s_endpgm")
    return kernel_desc(name, 160, 160)

def wave_sum(a, v, tmp):
    for off in (0x041F, 0x081F, 0x101F, 0x201F, 0x401F):
        a(f"ds_swizzle_b32 v{tmp}, v{v} offset:{off:#x}")
        a("s_waitcnt lgkmcnt(0)")
        a(f"v_add_f32 v{v}, v{v}, v{tmp}")
    a(f"v_mov_b32 v{tmp}, v{v}")
    a("s_nop 1")
    a(f"v_permlane32_swap_b32 v{v}, v{tmp}")
    a("s_nop 1")
    a(f"v_add_f32 v{v}, v{v}, v{tmp}")

def gen_ln(a, name, variant):
    kernel_header(a, name)
    L_end = a.newlabel("Lln_end")
    a(f"s_cmp_ge_u32 s2, 512")
    a(f"s_cbranch_scc1 {L_end}")
    a(f"s_load_dwordx2 s[4:5], s[0:1], {KA['x']}")
    a(f"s_load_dwordx2 s[8:9], s[0:1], {KA['ws']}")
    a("s_waitcnt lgkmcnt(0)")
    make_srd(a, 12, 4, SZ['x'])
    make_srd(a, 16, 8, 64 << 20)
    a("v_and_b32 v1, 63, v0")
    a("v_lshrrev_b32 v2, 6, v0")
    a("s_lshl_b32 s3, s2, 2")
    a("v_add_u32 v2, s3, v2")
    a("v_mul_u32_u24 v3, 896, v2")
    a("v_lshlrev_b32 v4, 4, v1")
    a("v_add_u32 v3, v3, v4")
    for r in range(10, 26):
        a(f"v_mov_b32 v{r}, 0")
    for r in range(40, 52):
        a(f"v_mov_b32 v{r}, 0")
    a("v_cmp_gt_u32 vcc, 56, v1")
    a("s_and_saveexec_b64 s[26:27], vcc")
    a("buffer_load_dwordx4 v[20:23], v3, s[12:15], 0 offen")
    si, ci = (0, 1) if variant == 'A' else (3, 4)
    a(f"buffer_load_dwordx4 v[40:43], v4, s[16:19], 0 offen offset:{WS_MOD + si*896}")
    a(f"buffer_load_dwordx4 v[44:47], v4, s[16:19], 0 offen offset:{WS_MOD + ci*896}")
    if variant == 'B':
        a(f"buffer_load_dwordx4 v[48:51], v4, s[16:19], 0 offen offset:{WS_MOD + 2*896}")
        a("v_lshlrev_b32 v5, 1, v3")
        for p in range(8):
            a(f"s_mov_b32 s24, {WS_PART + p*2048*1792}")
            a(f"buffer_load_dwordx4 v[{64+8*p}:{67+8*p}], v5, s[16:19], s24 offen")
            a(f"buffer_load_dwordx4 v[{68+8*p}:{71+8*p}], v5, s[16:19], s24 offen offset:16")
    a("s_waitcnt vmcnt(0)")
    for i in range(4):
        a(f"v_lshlrev_b32 v{10+2*i}, 16, v{20+i}")
        a(f"v_and_b32 v{11+2*i}, 0xffff0000, v{20+i}")
    if variant == 'B':
        for p in range(1, 8):
            for e in range(8):
                a(f"v_add_f32 v{64+e}, v{64+e}, v{64+8*p+e}")
        for i in range(4):
            round_pair(a, 64+2*i, 65+2*i, 30)
            a(f"v_lshlrev_b32 v31, 16, v{48+i}")
            a(f"v_and_b32 v32, 0xffff0000, v{48+i}")
            a(f"v_mul_f32 v{64+2*i}, v{64+2*i}, v31")
            a(f"v_mul_f32 v{65+2*i}, v{65+2*i}, v32")
            round_pair(a, 64+2*i, 65+2*i, 30)
            a(f"v_add_f32 v{10+2*i}, v{10+2*i}, v{64+2*i}")
            a(f"v_add_f32 v{11+2*i}, v{11+2*i}, v{65+2*i}")
            a(f"v_cvt_pk_bf16_f32 v{20+i}, v{10+2*i}, v{11+2*i}")
            a(f"v_lshlrev_b32 v{10+2*i}, 16, v{20+i}")
            a(f"v_and_b32 v{11+2*i}, 0xffff0000, v{20+i}")
        a(f"s_mov_b32 s24, {WS_X2}")
        a("buffer_store_dwordx4 v[20:23], v3, s[16:19], s24 offen")
    a("s_mov_b64 exec, s[26:27]")
    a("v_add_f32 v26, v10, v11")
    for e in range(2, 8):
        a(f"v_add_f32 v26, v26, v{10+e}")
    wave_sum(a, 26, 27)
    a("v_mul_f32 v26, 0x3b124925, v26")
    a("v_mov_b32 v28, 0")
    for e in range(8):
        a(f"v_sub_f32 v29, v{10+e}, v26")
        a(f"v_fmac_f32 v28, v29, v29")
    a("v_cmp_gt_u32 vcc, 56, v1")
    a("s_nop 1")
    a("v_cndmask_b32 v28, 0, v28, vcc")
    wave_sum(a, 28, 27)
    a("v_mul_f32 v28, 0x3b124925, v28")
    round_pair(a, 26, 28, 27)
    a("v_add_f32 v28, 0x3727c5ac, v28")
    round_one(a, 28, 27)
    a("v_sqrt_f32 v28, v28")
    a("s_nop 0")
    round_one(a, 28, 27)
    a("v_rcp_f32 v28, v28")
    a("s_nop 0")
    for i in range(4):
        e0, e1 = 10+2*i, 11+2*i
        a(f"v_sub_f32 v{e0}, v{e0}, v26")
        a(f"v_sub_f32 v{e1}, v{e1}, v26")
        round_pair(a, e0, e1, 30)
        a(f"v_mul_f32 v{e0}, v{e0}, v28")
        a(f"v_mul_f32 v{e1}, v{e1}, v28")
        round_pair(a, e0, e1, 30)
        a(f"v_lshlrev_b32 v31, 16, v{44+i}")
        a(f"v_and_b32 v32, 0xffff0000, v{44+i}")
        a("v_add_f32 v31, 1.0, v31")
        a("v_add_f32 v32, 1.0, v32")
        round_pair(a, 31, 32, 30)
        a(f"v_mul_f32 v{e0}, v{e0}, v31")
        a(f"v_mul_f32 v{e1}, v{e1}, v32")
        round_pair(a, e0, e1, 30)
        a(f"v_lshlrev_b32 v31, 16, v{40+i}")
        a(f"v_and_b32 v32, 0xffff0000, v{40+i}")
        a(f"v_add_f32 v{e0}, v{e0}, v31")
        a(f"v_add_f32 v{e1}, v{e1}, v32")
        a(f"v_cvt_pk_bf16_f32 v{20+i}, v{e0}, v{e1}")
    a("v_cmp_gt_u32 vcc, 56, v1")
    a("s_and_saveexec_b64 s[26:27], vcc")
    a(f"s_mov_b32 s24, {WS_H1 if variant == 'A' else WS_H2}")
    a("v_lshrrev_b32 v30, 5, v2")
    a("v_mul_u32_u24 v30, 28, v30")
    a("v_lshrrev_b32 v31, 1, v1")
    a("v_add_u32 v30, v30, v31")
    a("v_lshlrev_b32 v30, 6, v30")
    a("v_and_b32 v31, 1, v1")
    a("v_lshlrev_b32 v31, 5, v31")
    a("v_and_b32 v32, 31, v2")
    a("v_add3_u32 v30, v30, v31, v32")
    a("v_lshlrev_b32 v30, 4, v30")
    a("buffer_store_dwordx4 v[20:23], v30, s[16:19], s24 offen")
    a("s_waitcnt vmcnt(0)")
    a.label(L_end)
    a("s_endpgm")
    return kernel_desc(name, 128 if variant == 'B' else 64, 128 if variant == 'B' else 64)
```

```python
from asmlib import *

def stream_loop(a, lq, R, groups2, dma_fn, end_fn, vtoggle, stoggle, vm_wait, nbuf, frag_base, sLOOP,
                PD=5, dma_every=2, pre_wait=None, label="Lsl", hook=None):
    flat = [(0, it) for it in groups2[0]] + [(1, it) for it in groups2[1]]
    N = len(flat)
    assert N % nbuf == 0, (N, nbuf)
    npre = PD - 1
    def do_reads(i):
        g, (reads, mf) = flat[i % N]
        fb = frag_base + 4*(i % nbuf)
        n = 0
        for fn in reads: n += fn(fb)
        lq.issue(('s', i % N), n)
    a(f"s_waitcnt vmcnt({pre_wait})")
    a("s_barrier")
    if hook: hook()
    for i in range(npre): do_reads(i)
    q0 = list(lq.q)
    a(f"s_mov_b32 s{sLOOP}, 0")
    L = a.newlabel(label)
    a.raw(".p2align 3")
    a.label(L)
    next_rd = npre
    pos = 0
    nA = len(groups2[0])
    for gp in range(2):
        grp = groups2[gp]
        a(f"s_waitcnt vmcnt({vm_wait})")
        a("s_barrier")
        fill = dma_fn(gp)
        for k, (reads, mf) in enumerate(grp):
            fb = frag_base + 4*(pos % nbuf)
            tg = ('s', pos)
            if lq.has(tg):
                tags = {tg}
                if pos % 2 == 0 and lq.has(('s', (pos+1) % N)) and pos + 1 < N: tags.add(('s', pos+1))
                lq.need(tags)
            a(mf(fb))
            pos += 1
            while next_rd <= pos + PD - 2 and next_rd < N + npre:
                if next_rd == N:
                    for x in vtoggle: a(x)
                do_reads(next_rd); next_rd += 1
            if k % dma_every == 0:
                while fill:
                    x = fill.pop(0); a(x)
                    if not x.startswith("s_"): break
        for x in fill: a(x)
        for x in end_fn(gp): a(x)
    assert lq.q == q0, (lq.q, q0)
    for x in stoggle: a(x)
    a(f"s_add_u32 s{sLOOP}, s{sLOOP}, 1")
    a(f"s_cmp_lt_u32 s{sLOOP}, {R}")
    a(f"s_cbranch_scc1 {L}")
    a("s_waitcnt lgkmcnt(0)")
    lq.q = []
```

```python
import sys
sys.path.insert(0, "gen")
from asmlib import *
from k_small import gen_mod, gen_ln
from k_attn import gen_attn
from k_ffn import gen_gateup, gen_down

HDR = open("adaLN_cond__gqa_block_cached__swiglu_ffn__prompt.s.ref").read().split("; Override launch")[0]

KSTAMP = False
def main(path):
    a = Asm()
    descs = []
    a.raw('.amdgcn_target "amdgcn-amd-amdhsa--gfx950"')
    a.raw(".text")
    descs.append(gen_mod(a, "mod_kernel"))
    descs.append(gen_ln(a, "ln1_kernel", 'A'))
    descs.append(gen_attn(a, "attn_kernel"))
    descs.append(gen_ln(a, "ln2_kernel", 'B'))
    descs.append(gen_gateup(a, "gateup_kernel"))
    descs.append(gen_down(a, "down_kernel"))
    launch = """; @launch kernel=mod_kernel grid=(42,1,1) block=(256,1,1) lds=4096
; @launch kernel=ln1_kernel grid=(512,1,1) block=(256,1,1) lds=0
; @launch kernel=attn_kernel grid=(256,1,1) block=(256,1,1) lds=163840
; @launch kernel=ln2_kernel grid=(512,1,1) block=(256,1,1) lds=0
; @launch kernel=gateup_kernel grid=(224,1,1) block=(256,1,1) lds=131072
; @launch kernel=down_kernel grid=(224,1,1) block=(256,1,1) lds=131072
"""
    txt = a.text()
    if KSTAMP:
        import re
        names = ["mod_kernel","ln1_kernel","attn_kernel","ln2_kernel","gateup_kernel","down_kernel"]
        def st(ki, which):
            return f"""    s_load_dwordx2 s[96:97], s[0:1], 104
    s_memrealtime s[94:95]
    s_waitcnt lgkmcnt(0)
    s_add_u32 s96, s96, {(62<<20) + ki*65536 + which*8}
    s_addc_u32 s97, s97, 0
    s_mov_b32 s98, 65536
    s_mov_b32 s99, 0x00020000
    v_mov_b32 v{{A}}, s94
    v_mov_b32 v{{B}}, s95
    v_lshrrev_b32 v{{C}}, 6, v0
    v_lshlrev_b32 v{{C}}, 4, v{{C}}
    s_lshl_b32 s93, s2, 6
    v_add_u32 v{{C}}, s93, v{{C}}
    buffer_store_dwordx2 v[{{A}}:{{B}}], v{{C}}, s[96:99], 0 offen
    s_waitcnt vmcnt(0)
"""
        for ki, n in enumerate(names):
            txt = txt.replace(f"{n}:\n", f"{n}:\n" + st(ki,0).format(A=60,B=61,C=62), 1)
        ends = {"mod_kernel":"Lmod_end","ln1_kernel":"Lln_end","attn_kernel":"Lat_end","ln2_kernel":"Lln_end","gateup_kernel":"Lgu_end","down_kernel":"Ldn_end"}
        pos = 0
        for ki, n in enumerate(names):
            i0 = txt.index(f"{n}:\n", pos)
            m = re.compile(r"^" + ends[n] + r"_\d+:\n", re.M).search(txt, i0)
            ins = "    s_mov_b64 exec, -1\n" + st(ki,1).format(A=60,B=61,C=62)
            txt = txt[:m.start()] + ins + txt[m.start():]
            pos = m.end() + len(ins)
    out = HDR + launch + txt + '.section .rodata,"a"\n' + "".join(".p2align 6\n" + d for d in descs)
    open(path, "w").write(out)

if __name__ == "__main__":
    import k_attn
    if len(sys.argv) > 2 and sys.argv[2] == "stamp": k_attn.STAMP = True
    k_attn.EXP = set(sys.argv[3:])
    if len(sys.argv) > 2 and sys.argv[2] == "kstamp": KSTAMP = True
    main(sys.argv[1] if len(sys.argv) > 1 else "adaLN_cond__gqa_block_cached__swiglu_ffn__prompt.s")
```

```python
from asmlib import *
from stream import stream_loop
from k_fuse import *

S_K, S_V, S_WQ, S_WO, S_WS = 8, 12, 16, 20, 24
sWAVE, sKVH, sQB, sHSEL, sTSEL = 28, 29, 30, 31, 32
sKOFF, sVOFF, sLOOP, sC, sTHR, sW4K = 33, 34, 35, 36, 37, 38
sT0, sT1, sT2, sT3 = 40, 41, 42, 43

vLANE = 1
vKB = 2
vVB = 10
vKD = 14
vVD = 18
vM, vL, vS0, vS1 = 20, 21, 22, 23
vT = 24
vS = [40, 56]
vP = [72, 80]
vKF = 88
vVF = 104
vH = 128
vO = 128
aQACC = 0
aQ = 128

LDS_V = 65536
LDS_EX = 98304
THRESH = 0x5f800000
MBIAS = 0x42400000

STAMP = False
EXP = set()
WS_STAMP = 60 << 20

class LQ:
    def __init__(self, a):
        self.a = a
        self.q = []
    def issue(self, tag, n=1):
        for _ in range(n): self.q.append(tag)
    def has(self, tag):
        return tag in self.q
    def need(self, tags):
        idx = -1
        for i, t in enumerate(self.q):
            if t in tags: idx = i
        if idx < 0: return False
        n = len(self.q) - 1 - idx
        assert n <= 15, n
        self.a(f"s_waitcnt lgkmcnt({n})")
        self.q = self.q[idx+1:]
        return True

def mfma(d, A, B, C):
    return f"v_mfma_f32_32x32x16_bf16 {d}, {A}, {B}, {C}"

def stamp(a, idx):
    if not STAMP: return
    a("s_memtime s[60:61]" if idx < 100 else "s_memrealtime s[60:61]")
    idx = idx % 100
    a("s_waitcnt lgkmcnt(0)")
    a("v_mov_b32 v118, s60")
    a("v_mov_b32 v119, s61")
    a(f"s_lshl_b32 s62, s2, 9")
    a(f"s_lshl_b32 s63, s{sWAVE}, 7")
    a(f"s_add_u32 s62, s62, s63")
    a(f"s_add_u32 s62, s62, {WS_STAMP + idx*8}")
    a("v_mov_b32 v127, 0")
    a(f"buffer_store_dwordx2 v[118:119], v127, s[{S_WS}:{S_WS+3}], s62 offen")

def lane_fields(a):
    a(f"v_and_b32 v{vLANE}, 63, v0")
    a(f"v_lshrrev_b32 v120, 5, v{vLANE}")
    a(f"v_bfe_u32 v121, v{vLANE}, 2, 2")
    a(f"v_and_b32 v122, 3, v{vLANE}")
    a(f"v_bfe_u32 v123, v{vLANE}, 4, 1")
    a(f"v_and_b32 v124, 31, v{vLANE}")

def tr_base(a, dst, rowmul_h, pitch, dl, add):
    a(f"v_mul_u32_u24 v126, {rowmul_h}, v120")
    a(f"v_add_u32 v126, v126, v121")
    a(f"v_mul_u32_u24 v126, {pitch}, v126")
    a(f"v_xor_b32 v127, {dl}, v121")
    a(f"v_lshlrev_b32 v127, 6, v127")
    a(f"v_add_u32 v126, v126, v127")
    a(f"v_lshlrev_b32 v127, 5, v123")
    a(f"v_add_u32 v126, v126, v127")
    a(f"v_lshlrev_b32 v127, 3, v122")
    a(f"v_add_u32 v126, v126, v127")
    a(f"v_add_u32 v{dst}, {add}, v126")

def softmax_stream(sb, pb):
    S = vS[sb]; P = vP[pb]
    out = []
    pend = []
    for i in range(8):
        ta = vT + 2*(i % 3); tb = ta + 1
        cur = [f"v_cvt_pk_bf16_f32 v{ta}, 0, v{S+2*i}",
               f"v_cvt_pk_bf16_f32 v{tb}, 0, v{S+2*i+1}",
               f"v_fma_f32 v{ta}, v{ta}, s{sC}, -v{vM}",
               f"v_fma_f32 v{tb}, v{tb}, s{sC}, -v{vM}",
               f"v_exp_f32 v{ta}, v{ta}",
               f"v_exp_f32 v{tb}, v{tb}"]
        out.append(cur[0])
        out += pend
        out += cur[1:]
        if i == 0:
            pend = [f"v_add_f32 v{vS0}, v{ta}, v{tb}"]
        elif i == 1:
            pend = [f"v_add_f32 v{vS1}, v{ta}, v{tb}"]
        else:
            pend = [f"v_add_f32 v{vS0}, v{vS0}, v{ta}", f"v_add_f32 v{vS1}, v{vS1}, v{tb}"]
        pend.append(f"v_cvt_pk_bf16_f32 v{P+i}, v{ta}, v{tb}")
    out.append("s_nop 0")
    out += pend
    out.append(f"v_add_f32 v{vS0}, v{vS0}, v{vS1}")
    return out

def cost(ins):
    if ins.startswith("v_exp"): return 8
    return 4

def stream_gemm(a, lq, groups, dma_of_group, nbuf_frag, frag_base, PD=5, ndma_per=4, dma_every=2, pre_issued=3):
    G = len(groups)
    flat = []
    for g, grp in enumerate(groups):
        for it in grp: flat.append((g, it))
    N = len(flat)
    next_rd = 0
    def issue_reads(upto, gmax):
        nonlocal next_rd
        while next_rd < N and next_rd <= upto and flat[next_rd][0] <= gmax:
            g, (reads, mf) = flat[next_rd]
            fb = frag_base + 4*(next_rd % nbuf_frag)
            n = 0
            for fn in reads: n += fn(fb)
            lq.issue(('s', next_rd), n)
            next_rd += 1
    pos = 0
    for g, grp in enumerate(groups):
        issued = min(g + pre_issued, G)
        need = min(g + 1, G - 1)
        if 'sg_nodma' not in EXP: a(f"s_waitcnt vmcnt({ndma_per*(issued - need - 1)})")
        if 'sg_nobar' not in EXP: a("s_barrier")
        fill = dma_of_group(g + pre_issued) if g + pre_issued < G else []
        if 'sg_nodma' in EXP: fill = []
        issue_reads(pos + PD - 1, g + 1)
        for k, (reads, mf) in enumerate(grp):
            fb = frag_base + 4*(pos % nbuf_frag)
            if lq.has(('s', pos)):
                lq.need({('s', pos), ('s', pos+1)} if lq.has(('s', pos+1)) and (pos % 2 == 0) else {('s', pos)})
            a(mf(fb))
            pos += 1
            issue_reads(min(pos + PD - 1, pos + nbuf_frag - 1), g + 1)
            if k % dma_every == 0:
                while fill:
                    x = fill.pop(0); a(x)
                    if not x.startswith("s_"): break
        for x in fill: a(x)

def gen_attn(a, name):
    kernel_header(a, name)
    L_end = a.newlabel("Lat_end")
    a("s_cmp_ge_u32 s2, 256")
    a(f"s_cbranch_scc1 {L_end}")
    a(f"s_load_dwordx4 s[44:47], s[0:1], {KA['k']}")
    a(f"s_load_dwordx4 s[48:51], s[0:1], {KA['wq']}")
    a(f"s_load_dwordx2 s[52:53], s[0:1], {KA['ws']}")
    a("v_lshrrev_b32 v2, 6, v0")
    a("s_nop 0")
    a(f"v_readfirstlane_b32 s{sWAVE}, v2")
    a(f"s_and_b32 s{sKVH}, s2, 7")
    a(f"s_lshr_b32 s{sQB}, s2, 3")
    a("s_waitcnt lgkmcnt(0)")
    make_srd(a, S_K, 44, SZ['k'])
    make_srd(a, S_V, 46, SZ['v'])
    make_srd(a, S_WQ, 48, SZ['wq'])
    make_srd(a, S_WO, 50, SZ['wo'])
    make_srd(a, S_WS, 52, 128 << 20)
    a(f"s_lshr_b32 s{sHSEL}, s{sWAVE}, 1")
    a(f"s_and_b32 s{sTSEL}, s{sWAVE}, 1")
    a(f"s_lshl_b32 s{sW4K}, s{sWAVE}, 12")
    a(f"s_mov_b32 s{sC}, 0x3db8aa3b")
    a(f"s_mov_b32 s{sTHR}, {THRESH:#x}")
    stamp(a, 0); stamp(a, 108)
    lane_fields(a)
    if 'nowarm' not in EXP:
        a(f"s_mul_i32 s{sT0}, s{sQB}, 14")
        a(f"s_lshl_b32 s{sT1}, s{sWAVE}, 2")
        a(f"s_add_u32 s{sT0}, s{sT0}, s{sT1}")
        a(f"s_lshl_b32 s{sT0}, s{sT0}, 13")
        a(f"s_lshl_b32 s{sT1}, s{sKVH}, 10")
        a(f"s_add_u32 s{sT0}, s{sT0}, s{sT1}")
        a(f"v_lshlrev_b32 v126, 4, v{vLANE}")
        for i in range(4):
            a(f"buffer_load_dwordx4 v[{88+4*i}:{91+4*i}], v126, s[{S_WQ}:{S_WQ+3}], s{sT0} offen")
            a(f"s_add_u32 s{sT0}, s{sT0}, 8192")
    vWQD = 112
    def wqd_regs():
        for jp in range(2):
            a(f"v_add_u32 v126, {2*jp}, v120")
            a(f"v_and_b32 v126, 3, v126")
            a(f"v_lshlrev_b32 v126, 2, v126")
            a(f"v_xor_b32 v126, v126, v124")
            a(f"v_lshlrev_b32 v126, 4, v126")
            a(f"v_lshlrev_b32 v127, 13, v120")
            a(f"v_add_u32 v{vWQD+jp}, v126, v127")
    wqd_regs()
    a(f"s_lshl_b32 s{sT2}, s{sKVH}, 10")
    a(f"s_lshl_b32 s{sT3}, s{sWAVE}, 16")
    a(f"s_add_u32 s{sT2}, s{sT2}, s{sT3}")
    sMA, sMB, sHB = 54, 55, 56
    def wq_dma(mreg, madd=0):
        out = []
        for hs in range(2):
            for jj in range(4):
                out.append(f"s_add_u32 m0, s{mreg}, {madd + hs*65536 + jj*1024}")
                out.append(f"s_add_u32 s{sT3}, s{sT2}, {jj*16384 + hs*512}")
                out.append(f"buffer_load_dwordx4 v{vWQD + (jj&1)}, s[{S_WQ}:{S_WQ+3}], s{sT3} offen lds")
        out.append(f"s_add_u32 s{sT2}, s{sT2}, {32*8192 if 'wq_lin' not in EXP else 1024}")
        if 'qp_nodma' in EXP and mreg != sW4K: out = []
        return out
    vHO = 111
    vBF = 72
    def b_load(gp):
        return [f"buffer_load_dwordx4 v[{vBF+8*gp}:{vBF+8*gp+3}], v{vHO}, s[{S_WS}:{S_WS+3}], s{sHB} offen",
                f"buffer_load_dwordx4 v[{vBF+8*gp+4}:{vBF+8*gp+7}], v{vHO}, s[{S_WS}:{S_WS+3}], s{sHB} offen offset:1024",
                f"s_add_u32 s{sHB}, s{sHB}, 2048"]
    a(f"v_lshlrev_b32 v{vHO}, 4, v{vLANE}")
    a(f"s_lshl_b32 s{sT0}, s{sQB}, 1")
    a(f"s_add_u32 s{sT0}, s{sT0}, s{sTSEL}")
    a(f"s_mul_i32 s{sHB}, s{sT0}, {28*1024}")
    a(f"s_add_u32 s{sHB}, s{sHB}, {WS_H1}")
    for x in wq_dma(sW4K, 0): a(x)
    for x in wq_dma(sW4K, 16384): a(x)
    for x in b_load(0): a(x)
    for x in wq_dma(sW4K, 32768): a(x)
    for x in b_load(1): a(x)
    a(f"s_add_u32 s{sMA}, s{sW4K}, {32768+16384}")
    a(f"s_mov_b32 s{sMB}, s{sW4K}")
    vQB = 114
    a(f"s_lshl_b32 s{sT1}, s{sHSEL}, 16")
    for dl in range(4):
        tr_base(a, vQB+dl, 8, 512, dl, f"s{sT1}")
    for r in range(128):
        a(f"v_mov_b32 v{vO+r}, 0")
    lq = LQ(a)
    groups = []
    for gp in range(2):
        grp = []
        slot = gp * 16384
        for ks in range(2):
            for dt in range(8):
                off = slot + ks*8192 + (dt >> 2)*256
                def rd(fb, off=off, dt=dt):
                    a(f"ds_read_b64_tr_b16 v[{fb}:{fb+1}], v{vQB + (dt&3)} offset:{off}")
                    a(f"ds_read_b64_tr_b16 v[{fb+2}:{fb+3}], v{vQB + (dt&3)} offset:{off+2048}")
                    return 2
                def mf(fb, dt=dt, b=vBF+8*gp+4*ks):
                    acc = f"v[{vO+16*dt}:{vO+16*dt+15}]"
                    return mfma(acc, f"v[{fb}:{fb+3}]", f"v[{b}:{b+3}]", acc)
                grp.append(([rd], mf))
        groups.append(grp)
    stream_loop(a, lq, 7, groups, lambda gp: wq_dma(sMA if gp == 0 else sMB), b_load,
                [f"v_xor_b32 v{vQB+dl}, 32768, v{vQB+dl}" for dl in range(4)],
                [f"s_xor_b32 s{sMA}, s{sMA}, 32768", f"s_xor_b32 s{sMB}, s{sMB}, 32768"],
                10, 8, 40, sLOOP, PD=6, dma_every=2, pre_wait=20, label="Lqp", hook=lambda: stamp(a, 7))
    a("s_waitcnt vmcnt(0)")
    a("s_barrier")
    stamp(a, 1)
    a("v_and_b32 v125, 15, v124")
    a(f"v_lshlrev_b32 v127, 9, v124")
    for sl in range(8):
        a(f"v_add_u32 v126, {2*sl}, v120")
        a(f"v_xor_b32 v126, v126, v125")
        a(f"v_lshl_add_u32 v{vKB+sl}, v126, 4, v127")
    a(f"s_lshl_b32 s{sT0}, s{sWAVE}, 3")
    a(f"v_add_u32 v125, s{sT0}, v120")
    a(f"v_lshlrev_b32 v127, 9, v125")
    for j in range(4):
        a(f"v_add_u32 v126, {2*j}, v125")
        a(f"v_and_b32 v126, 15, v126")
        a(f"v_xor_b32 v126, v126, v124")
        a(f"v_lshl_add_u32 v{vKD+j}, v126, 4, v127")
    for jp in range(2):
        a(f"v_add_u32 v126, {2*jp}, v120")
        a(f"v_and_b32 v126, 3, v126")
        a(f"v_lshlrev_b32 v126, 2, v126")
        a(f"v_xor_b32 v126, v126, v124")
        a(f"v_lshl_add_u32 v{vVD+jp}, v126, 4, v127")
    a(f"s_lshl_b32 s{sKOFF}, s{sKVH}, 20")
    a(f"s_lshl_b32 s{sVOFF}, s{sKVH}, 20")
    def k_dma_list(slot):
        out = [f"s_add_u32 m0, s{sW4K}, {slot*16384}"]
        for j in range(4):
            out.append(f"buffer_load_dwordx4 v{vKD+j}, s[{S_K}:{S_K+3}], s{sKOFF} offen offset:{j*1024} lds")
        out.append(f"s_add_u32 s{sKOFF}, s{sKOFF}, 16384")
        return out
    def v_dma_list(slot):
        out = [f"s_add_u32 m0, s{sW4K}, {LDS_V + slot*16384}"]
        for j in range(4):
            out.append(f"buffer_load_dwordx4 v{vVD+(j&1)}, s[{S_V}:{S_V+3}], s{sVOFF} offen offset:{j*1024} lds")
        out.append(f"s_add_u32 s{sVOFF}, s{sVOFF}, 16384")
        return out
    def emit_dma(lst):
        for i, l in enumerate(lst):
            a(l)
            if i == 0: a("s_nop 0")
    a(f"s_mul_i32 s{sT0}, s{sKVH}, {512*896}")
    a(f"s_mul_i32 s{sT1}, s{sQB}, {14*1024}")
    a(f"s_add_u32 s{sT0}, s{sT0}, s{sT1}")
    a(f"s_lshl_b32 s{sT1}, s{sWAVE}, 12")
    a(f"s_add_u32 s{sT0}, s{sT0}, s{sT1}")
    a(f"v_lshlrev_b32 v126, 4, v{vLANE}")
    for i in range(4):
        a(f"buffer_load_dwordx4 v[{vKF+4*i}:{vKF+4*i+3}], v126, s[{S_WO}:{S_WO+3}], s{sT0} offen offset:{i*1024}")
    emit_dma(k_dma_list(0)); emit_dma(k_dma_list(1)); emit_dma(v_dma_list(0)); emit_dma(k_dma_list(2)); emit_dma(v_dma_list(1))
    for dl in range(4):
        tr_base(a, vVB+dl, 4, 512, dl, LDS_V)
    for dt in range(8):
        for u in range(2):
            tb = vT + 4*((dt*2+u) % 4)
            b = vO + 16*dt + 8*u
            for e in range(4):
                a(f"v_cvt_pk_bf16_f32 v{tb+e}, v{b+2*e}, v{b+2*e+1}")
            a("s_nop 1")
            a(f"v_permlane32_swap_b32 v{tb}, v{tb+2}")
            a(f"v_permlane32_swap_b32 v{tb+1}, v{tb+3}")
            a("s_nop 0")
            for e in range(4):
                a(f"v_accvgpr_write_b32 a{aQ + (dt*2+u)*4 + e}, v{tb+e}")
    for r in range(8):
        a(f"v_mov_b32 v{vP[1]+r}, 0")
    a(f"v_mov_b32 v{vM}, 0xff800000")
    a(f"v_mov_b32 v{vL}, 0")

    slow_paths = []
    def k_read(kslot, s, fb):
        a(f"ds_read_b128 v[{fb}:{fb+3}], v{vKB + (s&7)} offset:{kslot*16384 + (s>>3)*256}")
    def v_read(vslot, j, fb):
        ks, dt = j // 8, j % 8
        off = vslot*16384 + ks*8192 + (dt >> 2)*256
        a(f"ds_read_b64_tr_b16 v[{fb}:{fb+1}], v{vVB + (dt&3)} offset:{off}")
        a(f"ds_read_b64_tr_b16 v[{fb+2}:{fb+3}], v{vVB + (dt&3)} offset:{off+4096}")

    VPRE = 4
    PD = 5
    BUDGET = 24

    def body(t, do_qk, do_pv, do_sm, next_pv, vm_wait, dma_k, dma_v, pre=VPRE):
        par = t & 1
        kslot = (t+1) % 4
        vslot = (t-1) % 4
        nvslot = t % 4
        Sn = vS[1-par]
        Pp = vP[1-par]
        if vm_wait is not None:
            a(f"s_waitcnt vmcnt({vm_wait})")
            if 'nobar' not in EXP: a("s_barrier")
        if do_qk and do_pv:
            order = ['P']*4 + ['Q','Q','P']*8 + ['P']*4
        elif do_qk:
            order = ['Q']*16
        else:
            order = ['P']*16
        qi = pi = 0
        seq = []
        for o in order:
            if o == 'Q': seq.append(('Q', qi)); qi += 1
            else: seq.append(('P', pi)); pi += 1
        nm = len(seq)
        ext = seq + ([('N', j) for j in range(VPRE)] if next_pv else [])
        fill = []
        if dma_k is not None and 'nodma' not in EXP: fill += k_dma_list(dma_k)
        if dma_v is not None and 'nodma' not in EXP: fill += v_dma_list(dma_v)
        sm = softmax_stream(par, par) if do_sm else []
        if 'nosm' in EXP: sm = sm[-1:]
        issued = set()
        if do_pv:
            for j in range(pre): issued.add(('P', j))
        done_m = set()
        def buf_free(ty, idx):
            if ty == 'Q': return idx < 4 or ('Q', idx-4) in done_m
            if ty == 'P': return idx < 4 or ('P', idx-4) in done_m
            return (not do_pv) or ('P', 12+idx) in done_m
        def issue_reads(upto):
            c = 0
            for p in range(min(upto+1, len(ext))):
                it = ext[p]
                if it in issued: continue
                ty, idx = it
                if not buf_free(ty, idx): break
                if ty == 'Q':
                    k_read(kslot, idx, vKF + 4*(idx % 4)); lq.issue(('K', idx)); c += 4
                elif ty == 'P':
                    v_read(vslot, idx, vVF + 4*(idx % 4)); lq.issue(('V', idx), 2); c += 8
                else:
                    v_read(nvslot, idx, vVF + 4*(idx % 4)); lq.issue(('V', idx), 2); c += 8
                issued.add(it)
            return c
        tagof = lambda it: ('K', it[1]) if it[0] == 'Q' else ('V', it[1])
        issue_reads(PD + 1 if do_pv else PD)
        smi = 0
        total_sm = sum(cost(x) for x in sm)
        sm_done = 0
        ndma = sum(1 for x in fill if not x.startswith("s_"))
        dma_gaps = set()
        if ndma:
            step = (nm - 4) / ndma
            dma_gaps = {int(1 + i*step) for i in range(ndma)}
        for n, it in enumerate(seq):
            ty, idx = it
            used = 0
            tg = tagof(it)
            if lq.has(tg):
                tags = {tg}
                if n + 1 < nm and lq.has(tagof(seq[n+1])) and n % 2 == 0: tags.add(tagof(seq[n+1]))
                lq.need(tags)
            if ty == 'Q':
                fb = vKF + 4*(idx % 4)
                C = "0" if idx == 0 else f"v[{Sn}:{Sn+15}]"
                a(mfma(f"v[{Sn}:{Sn+15}]", f"v[{fb}:{fb+3}]", f"a[{aQ+4*idx}:{aQ+4*idx+3}]", C))
            else:
                fb = vVF + 4*(idx % 4)
                ks, dt = idx // 8, idx % 8
                o = f"v[{vO+16*dt}:{vO+16*dt+15}]"
                a(mfma(o, f"v[{fb}:{fb+3}]", f"v[{Pp+4*ks}:{Pp+4*ks+3}]", o))
            done_m.add(it)
            used += issue_reads(n + PD)
            if n in dma_gaps:
                while fill:
                    x = fill.pop(0); a(x); used += 4
                    if x.startswith("s_add_u32 m0"):
                        if smi < len(sm): a(sm[smi]); sm_done += cost(sm[smi]); used += cost(sm[smi]); smi += 1
                        else: a("s_nop 0")
                    if not x.startswith("s_"): break
            tgt = total_sm * (n+1) / max(nm - 3, 1)
            while smi < len(sm) and (sm_done < tgt) and (used + cost(sm[smi]) <= BUDGET or sm_done < tgt - 24):
                a(sm[smi]); sm_done += cost(sm[smi]); used += cost(sm[smi]); smi += 1
        for x in fill:
            a(x)
            if x.startswith("s_add_u32 m0"): a("s_nop 0")
        while smi < len(sm):
            a(sm[smi]); smi += 1
        issue_reads(len(ext))
        assert all(e in issued for e in ext), (t, [e for e in ext if e not in issued])
        if do_sm:
            Ls = a.newlabel("Lslow"); Lr = a.newlabel("Lret")
            a(f"v_cmp_lt_f32 vcc, s{sTHR}, v{vS0}")
            a("s_nop 1")
            a(f"s_cbranch_vccnz {Ls}")
            a.label(Lr)
            a(f"v_add_f32 v{vL}, v{vL}, v{vS0}")
            slow_paths.append((Ls, Lr, par))

    stamp(a, 2); stamp(a, 110)
    a("s_waitcnt vmcnt(16)")
    a("s_barrier")
    body(-1, True, False, False, True, None, None, None)
    a("s_nop 7")
    Lloop = a.newlabel("Lloop")
    a(f"s_mov_b32 s{sLOOP}, 0")
    a.raw(".p2align 3")
    a.label(Lloop)
    q0 = list(lq.q)
    for t in (0, 1, 2, 3):
        body(t, True, True, True, True, 8, (t+3) % 4, (t+2) % 4)
    assert q0 == lq.q, (q0, lq.q)
    a(f"s_add_u32 s{sLOOP}, s{sLOOP}, 1")
    a(f"s_cmp_lt_u32 s{sLOOP}, 16")
    a(f"s_cbranch_scc1 {Lloop}")
    body(64, False, True, False, False, None, None, None)
    a("s_waitcnt vmcnt(0)")
    a("s_barrier")
    stamp(a, 3); stamp(a, 111)
    vWOD = 2
    for rr in range(4):
        a(f"v_xor_b32 v126, {rr<<2}, v{vLANE}")
        a(f"v_lshlrev_b32 v{vWOD+rr}, 4, v126")
    a(f"s_lshl_b32 s{sT2}, s{sKVH}, 9")
    a(f"s_lshl_b32 s{sT3}, s{sWAVE}, 2")
    a(f"s_add_u32 s{sT2}, s{sT2}, s{sT3}")
    a(f"s_mul_i32 s{sT2}, s{sT2}, 896")
    sMA, sMB, sPO, sPN = 54, 55, 56, 57
    def wo_dma(mreg, madd=0):
        out = []
        for rr in range(4):
            out.append(f"s_add_u32 m0, s{mreg}, {madd + rr*1024}")
            out.append(f"s_add_u32 s{sT3}, s{sT2}, {rr*896}")
            out.append(f"buffer_load_dwordx4 v{vWOD+rr}, s[{S_WO}:{S_WO+3}], s{sT3} offen lds")
        out.append(f"s_add_u32 s{sT2}, s{sT2}, {16*896}")
        if 'op_nodma' in EXP and mreg != sW4K: out = []
        return out
    for g in range(4):
        for x in wo_dma(sW4K, g*16384): a(x)
    a(f"s_add_u32 s{sMA}, s{sW4K}, 65536")
    a(f"s_add_u32 s{sMB}, s{sW4K}, 81920")
    a(f"s_mov_b32 s{sPO}, 0")
    a(f"s_mov_b32 s{sPN}, 32768")
    a(f"v_mov_b32 v{vT}, v{vL}")
    a("s_nop 1")
    a(f"v_permlane32_swap_b32 v{vL}, v{vT}")
    a("s_nop 1")
    a(f"v_add_f32 v{vL}, v{vL}, v{vT}")
    a(f"v_rcp_f32 v{vL}, v{vL}")
    a(f"v_lshlrev_b32 v6, 4, v{vLANE}")
    a(f"s_lshl_b32 s{sT0}, s{sTSEL}, 15")
    a(f"s_lshl_b32 s{sT1}, s{sHSEL}, 14")
    a(f"s_add_u32 s{sT0}, s{sT0}, {LDS_EX}")
    a(f"v_add_u32 v7, s{sT0}, v6")
    a(f"v_add_u32 v6, s{sT1}, v7")
    a(f"v_mov_b32 v{vL+1}, v{vL}")
    a(f"v_mov_b32 v{vL+2}, v{vL}")
    for i in range(16):
        tb = 40 + 4*(i % 8)
        for e in range(0, 8, 2):
            a(f"v_pk_mul_f32 v[{vO+8*i+e}:{vO+8*i+e+1}], v[{vO+8*i+e}:{vO+8*i+e+1}], v[{vL+1}:{vL+2}]")
        for e in range(4):
            a(f"v_cvt_pk_bf16_f32 v{tb+e}, v{vO+8*i+2*e}, v{vO+8*i+2*e+1}")
        a(f"ds_write_b128 v6, v[{tb}:{tb+3}] offset:{i*1024}")
    vOB = 8; vOC = 15
    a(f"s_mul_i32 s{sT0}, s{sHSEL}, 7")
    a(f"v_lshl_add_u32 v126, v120, 2, v121")
    a(f"v_lshlrev_b32 v126, 10, v126")
    a(f"v_lshl_add_u32 v126, v123, 5, v126")
    a(f"v_lshl_add_u32 v126, v122, 3, v126")
    for i in range(7):
        a(f"s_add_u32 s{sT3}, s{sT0}, {i}")
        a(f"v_xor_b32 v125, s{sT3}, v121")
        a(f"v_lshl_add_u32 v{vOB+i}, v125, 6, v126")
        a(f"v_mov_b32 v{vOC+i}, v{vOB+i}")
    for r in range(112):
        a(f"v_mov_b32 v{vO+r}, 0")
    a("s_waitcnt lgkmcnt(0)")
    stamp(a, 4)
    lq.q = []
    groups = []
    for gp in range(2):
        grp = []
        for i in range(7):
            def rd(fb, i=i, gp=gp):
                n = 2
                if i == 0:
                    a(f"ds_read_b128 v[{96+4*gp}:{99+4*gp}], v7 offset:{gp*1024}"); n = 3
                a(f"ds_read_b64_tr_b16 v[{fb}:{fb+1}], v{vOC+i} offset:{gp*16384}")
                a(f"ds_read_b64_tr_b16 v[{fb+2}:{fb+3}], v{vOC+i} offset:{gp*16384+8192}")
                return n
            def mf(fb, i=i, gp=gp):
                acc = f"v[{vO+16*i}:{vO+16*i+15}]"
                return mfma(acc, f"v[{fb}:{fb+3}]", f"v[{96+4*gp}:{99+4*gp}]", acc)
            grp.append(([rd], mf))
        groups.append(grp)
    stream_loop(a, lq, 16, groups, lambda gp: wo_dma(sMA if gp == 0 else sMB), lambda gp: [],
                [f"v_add_u32 v{vOC+i}, s{sPN}, v{vOB+i}" for i in range(7)] + ["v_add_u32 v7, 2048, v7"],
                [f"s_add_u32 s{sMA}, s{sW4K}, s{sPO}", f"s_add_u32 s{sMB}, s{sMA}, 16384",
                 f"s_mov_b32 s{sPO}, s{sPN}",
                 f"s_add_u32 s{sPN}, s{sPN}, 32768", f"s_cmp_eq_u32 s{sPN}, 98304", f"s_cselect_b32 s{sPN}, 0, s{sPN}"],
                4, 7, 40, sLOOP, PD=5, dma_every=1, pre_wait=12, label="Lop", bar_per_iter=True)
    a("s_waitcnt vmcnt(0)")
    stamp(a, 12)
    a("s_barrier")
    a(f"s_mul_i32 s{sT0}, s{sWAVE}, {32*912}")
    a(f"v_mul_u32_u24 v6, 912, v124")
    a(f"v_lshl_add_u32 v6, v120, 4, v6")
    a(f"v_add_u32 v6, s{sT0}, v6")
    a("s_nop 7")
    a("s_nop 4")
    for i in range(7):
        for q in range(4):
            r0 = vO + 16*i + 4*q
            a(f"ds_write_b128 v6, v[{r0}:{r0+3}] offset:{i*128+q*32}")
    a(f"v_lshlrev_b32 v7, 4, v{vLANE}")
    a(f"v_add_u32 v6, s{sT0}, v7")
    a(f"s_lshl_b32 s{sT0}, s{sQB}, 6")
    a(f"s_lshl_b32 s{sT1}, s{sTSEL}, 5")
    a(f"s_add_u32 s{sT0}, s{sT0}, s{sT1}")
    a(f"s_lshl_b32 s{sT1}, s{sKVH}, 11")
    a(f"s_add_u32 s{sT0}, s{sT0}, s{sT1}")
    a(f"s_mul_i32 s{sT0}, s{sT0}, 1792")
    a(f"s_mul_i32 s{sT1}, s{sHSEL}, 896")
    a(f"s_add_u32 s{sT1}, s{sT1}, {WS_PART}")
    a(f"s_add_u32 s{sT1}, s{sT1}, s{sT0}")
    a(f"v_cmp_gt_u32 vcc, 56, v{vLANE}")
    a("s_waitcnt lgkmcnt(0)")
    a("s_and_saveexec_b64 s[58:59], vcc")
    for half in range(2):
        for rr in range(16):
            a(f"ds_read_b128 v[{vO+4*rr}:{vO+4*rr+3}], v6 offset:{(half*16+rr)*912}")
        for rr in range(16):
            a(f"s_waitcnt lgkmcnt({15-rr})")
            a(f"buffer_store_dwordx4 v[{vO+4*rr}:{vO+4*rr+3}], v7, s[{S_WS}:{S_WS+3}], s{sT1} offen")
            a(f"s_add_u32 s{sT1}, s{sT1}, 1792")
        if half == 0: a("s_nop 1")
    a("s_mov_b64 exec, s[58:59]")
    stamp(a, 5)
    a("s_waitcnt vmcnt(0)")
    stamp(a, 6); stamp(a, 109)
    a("s_waitcnt vmcnt(0)")
    a.label(L_end)
    a("s_endpgm")
    for (Ls, Lr, par) in slow_paths:
        S = vS[par]
        a.label(Ls)
        a(f"v_max3_f32 v{vT}, v{S}, v{S+1}, v{S+2}")
        for i in range(3, 15, 2):
            a(f"v_max3_f32 v{vT}, v{vT}, v{S+i}, v{S+i+1}")
        a(f"v_max_f32 v{vT}, v{vT}, v{S+15}")
        a(f"v_mov_b32 v{vT+1}, v{vT}")
        a("s_nop 1")
        a(f"v_permlane32_swap_b32 v{vT}, v{vT+1}")
        a("s_nop 1")
        a(f"v_max_f32 v{vT}, v{vT}, v{vT+1}")
        a(f"v_cvt_pk_bf16_f32 v{vT}, 0, v{vT}")
        a(f"v_mov_b32 v{vT+2}, {MBIAS:#x}")
        a(f"v_fma_f32 v{vT}, v{vT}, s{sC}, v{vT+2}")
        a(f"v_max_f32 v{vT}, v{vT}, v{vM}")
        a(f"v_sub_f32 v{vT+1}, v{vM}, v{vT}")
        a(f"v_exp_f32 v{vT+1}, v{vT+1}")
        a(f"v_mov_b32 v{vM}, v{vT}")
        a("s_nop 7")
        a("s_nop 7")
        a(f"v_mul_f32 v{vL}, v{vL}, v{vT+1}")
        for r in range(128):
            a(f"v_mul_f32 v{vO+r}, v{vO+r}, v{vT+1}")
        for x in softmax_stream(par, par):
            a(x)
        a("s_nop 1")
        a(f"s_branch {Lr}")
    return kernel_desc(name, 256+192, 256)
```

```python
from asmlib import *
from k_small import round_pair, round_one, wave_sum

WS_H1P = 64 << 20
LDS_T = 131072
LDS_R = 131072 + 2048

def poll(a, srd, voff_reg, vtmp, stmp, target, lbl):
    L = a.newlabel(lbl)
    a.label(L)
    a(f"buffer_load_dword v{vtmp}, v{voff_reg}, s[{srd}:{srd+3}], 0 offen sc1")
    a("s_waitcnt vmcnt(0)")
    a(f"v_readfirstlane_b32 s{stmp}, v{vtmp}")
    a("s_nop 3")
    a(f"s_cmp_ge_u32 s{stmp}, {target}")
    Ld = a.newlabel(lbl + "d")
    a(f"s_cbranch_scc1 {Ld}")
    a("s_sleep 2")
    a(f"s_branch {L}")
    a.label(Ld)

def mod_slice(a, S_C, S_WM, S_WS, S_DBG, sT0, sT1, sT2):
    Lskip = a.newlabel("Lmskip")
    a("s_cmp_ge_u32 s2, 168")
    a(f"s_cbranch_scc1 {Lskip}")
    a("v_and_b32 v2, 7, v0")
    a("v_lshrrev_b32 v3, 3, v0")
    a(f"s_mov_b32 s{sT0}, {14*5376}")
    a(f"v_mul_lo_u32 v4, v3, s{sT0}")
    a(f"s_lshl_b32 s{sT0}, s2, 5")
    a("v_lshlrev_b32 v5, 2, v2")
    a(f"v_add3_u32 v4, v4, v5, s{sT0}")
    for kk in range(14):
        a(f"s_mov_b32 s{sT1}, {kk*5376}")
        a(f"buffer_load_dword v{128+kk}, v4, s[{S_WM}:{S_WM+3}], s{sT1} offen")
    a("v_lshlrev_b32 v5, 2, v0")
    a(f"buffer_load_dword v6, v5, s[{S_C}:{S_C+3}], 0 offen")
    a("s_waitcnt vmcnt(0)")
    a("v_lshlrev_b32 v8, 16, v6")
    a("v_and_b32 v9, 0xffff0000, v6")
    for r in (8, 9):
        a(f"v_mul_f32 v6, 0xbfb8aa3b, v{r}")
        a("v_exp_f32 v6, v6")
        a("s_nop 0")
        a("v_add_f32 v6, 1.0, v6")
        a("v_rcp_f32 v6, v6")
        a("s_nop 0")
        a(f"v_mul_f32 v{r}, v{r}, v6")
        a(f"v_cvt_pk_bf16_f32 v{r}, 0, v{r}")
    a("v_lshlrev_b32 v5, 3, v0")
    a(f"v_add_u32 v5, {LDS_T}, v5")
    a("ds_write_b64 v5, v[8:9]")
    a("s_waitcnt lgkmcnt(0)")
    a("s_barrier")
    a("v_mul_u32_u24 v5, 56, v3")
    a(f"v_add_u32 v5, {LDS_T}, v5")
    for q in range(7):
        a(f"ds_read_b64 v[{144+2*q}:{145+2*q}], v5 offset:{8*q}")
    a("v_mov_b32 v8, 0")
    a("v_mov_b32 v9, 0")
    a("s_waitcnt lgkmcnt(0)")
    for kk in range(14):
        a(f"v_lshlrev_b32 v6, 16, v{128+kk}")
        a(f"v_and_b32 v7, 0xffff0000, v{128+kk}")
        a(f"v_fmac_f32 v8, v6, v{144+kk}")
        a(f"v_fmac_f32 v9, v7, v{144+kk}")
    a("v_lshlrev_b32 v5, 6, v3")
    a("v_lshl_add_u32 v5, v2, 3, v5")
    a(f"v_add_u32 v5, {LDS_R}, v5")
    a("ds_write_b64 v5, v[8:9]")
    a("s_waitcnt lgkmcnt(0)")
    a("s_barrier")
    Lw = a.newlabel("Lmw")
    a("v_cmp_gt_u32 vcc, 16, v0")
    a("s_and_saveexec_b64 s[58:59], vcc")
    a(f"s_cbranch_execz {Lw}")
    a("v_lshlrev_b32 v5, 2, v0")
    a(f"v_add_u32 v5, {LDS_R}, v5")
    for j in range(32):
        a(f"ds_read_b32 v{128+j}, v5 offset:{64*j}")
    a("s_waitcnt lgkmcnt(0)")
    for j in range(1, 32):
        a(f"v_add_f32 v128, v128, v{128+j}")
    a("v_cvt_pk_bf16_f32 v128, 0, v128")
    a(f"s_mul_hi_u32 s{sT1}, s2, 0x924924a")
    a(f"s_cmp_eq_u32 s{sT1}, 1")
    a(f"s_cselect_b32 s{sT2}, 1.0, 0")
    a(f"s_cmp_eq_u32 s{sT1}, 4")
    a(f"s_cselect_b32 s{sT2}, 1.0, s{sT2}")
    a(f"v_add_f32 v128, s{sT2}, v128")
    a("v_cvt_pk_bf16_f32 v128, v128, v128")
    a("v_lshlrev_b32 v5, 1, v0")
    a(f"s_add_u32 s{sT0}, s{sT0}, {WS_MOD}")
    a(f"buffer_store_short v128, v5, s[{S_WS}:{S_WS+3}], s{sT0} offen sc1")
    a("s_waitcnt vmcnt(0)")
    a("v_cmp_eq_u32 vcc, 0, v0")
    a("s_and_b64 exec, exec, vcc")
    a("v_mov_b32 v5, 4")
    a("v_mov_b32 v6, 1")
    a(f"buffer_atomic_add v6, v5, s[{S_DBG}:{S_DBG+3}], 0 offen sc1")
    La = a.newlabel("Lma")
    a("s_cmp_ge_u32 s2, 56")
    a(f"s_cbranch_scc1 {La}")
    a("v_mov_b32 v5, 0")
    a(f"buffer_atomic_add v6, v5, s[{S_DBG}:{S_DBG+3}], 0 offen sc1")
    a.label(La)
    a.label(Lw)
    a("s_mov_b64 exec, s[58:59]")
    a.label(Lskip)

def ln1_part1(a, S_X, sWAVE, sQB, sT0, sT1):
    a("v_and_b32 v11, 63, v0")
    a("v_lshrrev_b32 v12, 2, v11")
    a("v_and_b32 v13, 3, v11")
    a(f"s_lshl_b32 s{sT0}, s{sQB}, 6")
    a(f"s_lshl_b32 s{sT1}, s{sWAVE}, 4")
    a(f"s_add_u32 s{sT0}, s{sT0}, s{sT1}")
    a(f"v_add_u32 v14, s{sT0}, v12")
    a("v_mul_u32_u24 v14, 896, v14")
    a("v_mul_u32_u24 v15, 224, v13")
    a("v_add_u32 v14, v14, v15")
    for j in range(14):
        a(f"buffer_load_dwordx4 v[{40+4*j}:{43+4*j}], v14, s[{S_X}:{S_X+3}], 0 offen offset:{16*j}")

def ln1_part2(a, S_WS, S_DBG, sWAVE, sT0, sT1, sT2, hook=None):
    E = 144
    a("v_and_b32 v1, 63, v0")
    a("v_lshrrev_b32 v2, 2, v1")
    a("v_and_b32 v3, 3, v1")
    a("v_mul_u32_u24 v5, 224, v3")
    a("s_waitcnt vmcnt(0)")
    for i in range(56):
        a(f"v_lshlrev_b32 v{E+2*i}, 16, v{40+i}")
        a(f"v_and_b32 v{E+2*i+1}, 0xffff0000, v{40+i}")
    a(f"v_add_f32 v6, v{E}, v{E+1}")
    a(f"v_add_f32 v7, v{E+2}, v{E+3}")
    for i in range(4, 112, 2):
        a(f"v_add_f32 v6, v6, v{E+i}")
        a(f"v_add_f32 v7, v7, v{E+i+1}")
    a("v_add_f32 v6, v6, v7")
    def quad_sum(r):
        a("s_nop 1")
        a(f"v_add_f32_dpp v{r}, v{r}, v{r} quad_perm:[1,0,3,2] row_mask:0xf bank_mask:0xf")
        a("s_nop 1")
        a(f"v_add_f32_dpp v{r}, v{r}, v{r} quad_perm:[2,3,0,1] row_mask:0xf bank_mask:0xf")
    quad_sum(6)
    a("v_mul_f32 v6, 0x3b124925, v6")
    a("v_mov_b32 v7, 0")
    a("v_mov_b32 v8, 0")
    for i in range(0, 112, 2):
        a(f"v_sub_f32 v9, v{E+i}, v6")
        a(f"v_sub_f32 v10, v{E+i+1}, v6")
        a("v_fmac_f32 v7, v9, v9")
        a("v_fmac_f32 v8, v10, v10")
    a("v_add_f32 v7, v7, v8")
    quad_sum(7)
    a("v_mul_f32 v7, 0x3b124925, v7")
    a("v_cvt_pk_bf16_f32 v6, 0, v6")
    a("v_cvt_pk_bf16_f32 v7, 0, v7")
    a("v_add_f32 v7, 0x3727c5ac, v7")
    a("v_cvt_pk_bf16_f32 v7, 0, v7")
    a("v_sqrt_f32 v7, v7")
    a("s_nop 0")
    a("v_cvt_pk_bf16_f32 v7, 0, v7")
    a("v_rcp_f32 v7, v7")
    a("s_nop 0")
    for i in range(112):
        a(f"v_sub_f32 v{E+i}, v{E+i}, v6")
        a(f"v_cvt_pk_bf16_f32 v{E+i}, 0, v{E+i}")
        a(f"v_mul_f32 v{E+i}, v{E+i}, v7")
        a(f"v_cvt_pk_bf16_f32 v{E+i}, 0, v{E+i}")
    if hook: hook(13)
    a("v_mov_b32 v8, 0")
    poll(a, S_DBG, 8, 9, sT0, 56, "Lpm")
    if hook: hook(14)
    for j in range(14):
        a(f"buffer_load_dwordx4 v[{40+4*j}:{43+4*j}], v5, s[{S_WS}:{S_WS+3}], 0 offen offset:{WS_MOD + 896 + 16*j} sc1")
    for j in range(14):
        a(f"buffer_load_dwordx4 v[{96+4*(j%8)}:{99+4*(j%8)}], v5, s[{S_WS}:{S_WS+3}], 0 offen offset:{WS_MOD + 16*j} sc1") if j < 8 else None
    a(f"s_lshr_b32 s{sT0}, s{sWAVE}, 1")
    a(f"s_mul_i32 s{sT0}, s{sT0}, 28")
    a("v_mul_u32_u24 v10, 7, v3")
    a(f"v_add_u32 v10, s{sT0}, v10")
    a("v_lshlrev_b32 v10, 6, v10")
    a(f"s_and_b32 s{sT1}, s{sWAVE}, 1")
    a(f"s_lshl_b32 s{sT1}, s{sT1}, 4")
    a(f"v_add3_u32 v10, v10, v2, s{sT1}")
    a("v_lshlrev_b32 v10, 4, v10")
    a(f"s_mul_i32 s{sT2}, s2, 57344")
    a(f"s_add_u32 s{sT2}, s{sT2}, {WS_H1P}")
    a("s_waitcnt vmcnt(8)")
    for i in range(56):
        a(f"v_lshlrev_b32 v11, 16, v{40+i}")
        a(f"v_and_b32 v12, 0xffff0000, v{40+i}")
        a(f"v_mul_f32 v{E+2*i}, v{E+2*i}, v11")
        a(f"v_mul_f32 v{E+2*i+1}, v{E+2*i+1}, v12")
        a(f"v_cvt_pk_bf16_f32 v{E+2*i}, 0, v{E+2*i}")
        a(f"v_cvt_pk_bf16_f32 v{E+2*i+1}, 0, v{E+2*i+1}")
    for j in range(8, 14):
        a(f"buffer_load_dwordx4 v[{40+4*(j-8)}:{43+4*(j-8)}], v5, s[{S_WS}:{S_WS+3}], 0 offen offset:{WS_MOD + 16*j} sc1")
    a("s_waitcnt vmcnt(0)")
    for j in range(14):
        sb = 96 + 4*j if j < 8 else 40 + 4*(j-8)
        ob = 64 + 4*(j % 4)
        for e in range(4):
            i = 4*j + e
            a(f"v_lshlrev_b32 v11, 16, v{sb+e}")
            a(f"v_and_b32 v12, 0xffff0000, v{sb+e}")
            a(f"v_add_f32 v{E+2*i}, v{E+2*i}, v11")
            a(f"v_add_f32 v{E+2*i+1}, v{E+2*i+1}, v12")
            a(f"v_cvt_pk_bf16_f32 v{ob+e}, v{E+2*i}, v{E+2*i+1}")
        a(f"s_add_u32 s{sT1}, s{sT2}, {(j>>1)*1024 + (j&1)*512}")
        a(f"buffer_store_dwordx4 v[{ob}:{ob+3}], v10, s[{S_WS}:{S_WS+3}], s{sT1} offen")
    a("s_waitcnt vmcnt(0)")
    a("s_barrier")

def ln2_token(a, S_X, S_WS, stok, sT0):
    a("v_and_b32 v1, 63, v0")
    a(f"v_mov_b32 v2, s{stok}")
    a("v_mul_u32_u24 v3, 896, v2")
    a("v_lshlrev_b32 v4, 4, v1")
    a("v_add_u32 v3, v3, v4")
    for r in range(10, 26): a(f"v_mov_b32 v{r}, 0")
    for r in range(40, 52): a(f"v_mov_b32 v{r}, 0")
    a("v_cmp_gt_u32 vcc, 56, v1")
    a("s_and_saveexec_b64 s[58:59], vcc")
    a(f"buffer_load_dwordx4 v[20:23], v3, s[{S_X}:{S_X+3}], 0 offen")
    a(f"buffer_load_dwordx4 v[40:43], v4, s[{S_WS}:{S_WS+3}], 0 offen offset:{WS_MOD + 3*896} sc1")
    a(f"buffer_load_dwordx4 v[44:47], v4, s[{S_WS}:{S_WS+3}], 0 offen offset:{WS_MOD + 4*896 - 4096} sc1") if False else None
    a(f"s_mov_b32 s{sT0}, {WS_MOD + 4*896}")
    a(f"buffer_load_dwordx4 v[44:47], v4, s[{S_WS}:{S_WS+3}], s{sT0} offen sc1")
    a(f"buffer_load_dwordx4 v[48:51], v4, s[{S_WS}:{S_WS+3}], 0 offen offset:{WS_MOD + 2*896} sc1")
    a("v_lshlrev_b32 v5, 1, v3")
    for p in range(8):
        a(f"s_mov_b32 s{sT0}, {WS_PART + p*2048*1792}")
        a(f"buffer_load_dwordx4 v[{64+8*p}:{67+8*p}], v5, s[{S_WS}:{S_WS+3}], s{sT0} offen sc1")
        a(f"buffer_load_dwordx4 v[{68+8*p}:{71+8*p}], v5, s[{S_WS}:{S_WS+3}], s{sT0} offen offset:16 sc1")
    a("s_waitcnt vmcnt(0)")
    for i in range(4):
        a(f"v_lshlrev_b32 v{10+2*i}, 16, v{20+i}")
        a(f"v_and_b32 v{11+2*i}, 0xffff0000, v{20+i}")
    for p in range(1, 8):
        for e in range(8):
            a(f"v_add_f32 v{64+e}, v{64+e}, v{64+8*p+e}")
    for i in range(4):
        a(f"v_cvt_pk_bf16_f32 v{64+2*i}, 0, v{64+2*i}")
        a(f"v_cvt_pk_bf16_f32 v{65+2*i}, 0, v{65+2*i}")
        a(f"v_lshlrev_b32 v31, 16, v{48+i}")
        a(f"v_and_b32 v32, 0xffff0000, v{48+i}")
        a(f"v_mul_f32 v{64+2*i}, v{64+2*i}, v31")
        a(f"v_mul_f32 v{65+2*i}, v{65+2*i}, v32")
        a(f"v_cvt_pk_bf16_f32 v{64+2*i}, 0, v{64+2*i}")
        a(f"v_cvt_pk_bf16_f32 v{65+2*i}, 0, v{65+2*i}")
        a(f"v_add_f32 v{10+2*i}, v{10+2*i}, v{64+2*i}")
        a(f"v_add_f32 v{11+2*i}, v{11+2*i}, v{65+2*i}")
        a(f"v_cvt_pk_bf16_f32 v{20+i}, v{10+2*i}, v{11+2*i}")
        a(f"v_lshlrev_b32 v{10+2*i}, 16, v{20+i}")
        a(f"v_and_b32 v{11+2*i}, 0xffff0000, v{20+i}")
    a(f"s_mov_b32 s{sT0}, {WS_X2}")
    a(f"buffer_store_dwordx4 v[20:23], v3, s[{S_WS}:{S_WS+3}], s{sT0} offen")
    a("s_mov_b64 exec, s[58:59]")
    a("v_add_f32 v26, v10, v11")
    for e in range(2, 8): a(f"v_add_f32 v26, v26, v{10+e}")
    wave_sum(a, 26, 27)
    a("v_mul_f32 v26, 0x3b124925, v26")
    a("v_mov_b32 v28, 0")
    for e in range(8):
        a(f"v_sub_f32 v29, v{10+e}, v26")
        a(f"v_fmac_f32 v28, v29, v29")
    a("v_cmp_gt_u32 vcc, 56, v1")
    a("s_nop 1")
    a("v_cndmask_b32 v28, 0, v28, vcc")
    wave_sum(a, 28, 27)
    a("v_mul_f32 v28, 0x3b124925, v28")
    a("v_cvt_pk_bf16_f32 v26, 0, v26")
    a("v_cvt_pk_bf16_f32 v28, 0, v28")
    a("v_add_f32 v28, 0x3727c5ac, v28")
    a("v_cvt_pk_bf16_f32 v28, 0, v28")
    a("v_sqrt_f32 v28, v28")
    a("s_nop 0")
    a("v_cvt_pk_bf16_f32 v28, 0, v28")
    a("v_rcp_f32 v28, v28")
    a("s_nop 0")
    for i in range(4):
        e0, e1 = 10+2*i, 11+2*i
        for e in (e0, e1):
            a(f"v_sub_f32 v{e}, v{e}, v26")
            a(f"v_cvt_pk_bf16_f32 v{e}, 0, v{e}")
            a(f"v_mul_f32 v{e}, v{e}, v28")
            a(f"v_cvt_pk_bf16_f32 v{e}, 0, v{e}")
        a(f"v_lshlrev_b32 v31, 16, v{44+i}")
        a(f"v_and_b32 v32, 0xffff0000, v{44+i}")
        a(f"v_mul_f32 v{e0}, v{e0}, v31")
        a(f"v_mul_f32 v{e1}, v{e1}, v32")
        a(f"v_cvt_pk_bf16_f32 v{e0}, 0, v{e0}")
        a(f"v_cvt_pk_bf16_f32 v{e1}, 0, v{e1}")
        a(f"v_lshlrev_b32 v31, 16, v{40+i}")
        a(f"v_and_b32 v32, 0xffff0000, v{40+i}")
        a(f"v_add_f32 v{e0}, v{e0}, v31")
        a(f"v_add_f32 v{e1}, v{e1}, v32")
        a(f"v_cvt_pk_bf16_f32 v{20+i}, v{e0}, v{e1}")
    a("v_cmp_gt_u32 vcc, 56, v1")
    a("s_and_saveexec_b64 s[58:59], vcc")
    a(f"s_mov_b32 s{sT0}, {WS_H2}")
    a("v_lshrrev_b32 v30, 5, v2")
    a("v_mul_u32_u24 v30, 28, v30")
    a("v_lshrrev_b32 v31, 1, v1")
    a("v_add_u32 v30, v30, v31")
    a("v_lshlrev_b32 v30, 6, v30")
    a("v_and_b32 v31, 1, v1")
    a("v_lshlrev_b32 v31, 5, v31")
    a("v_and_b32 v32, 31, v2")
    a("v_add3_u32 v30, v30, v31, v32")
    a("v_lshlrev_b32 v30, 4, v30")
    a(f"buffer_store_dwordx4 v[20:23], v30, s[{S_WS}:{S_WS+3}], s{sT0} offen")
    a("s_mov_b64 exec, s[58:59]")
```

```python
from asmlib import *

LOG2E = 0x3fb8aa3b

def round_pair(a, va, vb, tmp):
    a(f"v_cvt_pk_bf16_f32 v{tmp}, v{va}, v{vb}")
    a(f"v_lshlrev_b32 v{va}, 16, v{tmp}")
    a(f"v_and_b32 v{vb}, 0xffff0000, v{tmp}")

def round_one(a, va, tmp):
    a(f"v_cvt_pk_bf16_f32 v{tmp}, v{va}, v{va}")
    a(f"v_lshlrev_b32 v{va}, 16, v{tmp}")

def gen_mod(a, name, fused_label=None):
    kernel_header(a, name)
    L_end = a.newlabel("Lmod_end")
    a(f"s_cmp_ge_u32 s2, 42")
    a(f"s_cbranch_scc1 {fused_label or L_end}")
    a(f"s_load_dwordx2 s[28:29], s[0:1], {KA['dbg']}")
    a(f"s_load_dwordx2 s[4:5], s[0:1], {KA['c']}")
    a(f"s_load_dwordx2 s[6:7], s[0:1], {KA['wmod']}")
    a(f"s_load_dwordx2 s[8:9], s[0:1], {KA['ws']}")
    a("s_waitcnt lgkmcnt(0)")
    make_srd(a, 12, 4, SZ['c'])
    make_srd(a, 16, 6, SZ['wmod'])
    make_srd(a, 20, 8, 2688*2)
    make_srd(a, 32, 28, 256)
    a("v_lshlrev_b32 v1, 1, v0")
    a("buffer_load_ushort v2, v1, s[12:15], 0 offen")
    a("buffer_load_ushort v3, v1, s[12:15], 0 offen offset:512")
    a("s_waitcnt vmcnt(0)")
    for r in (2, 3):
        a(f"v_lshlrev_b32 v{r}, 16, v{r}")
        a(f"v_mul_f32 v4, 0xbfb8aa3b, v{r}")
        a(f"v_exp_f32 v4, v4")
        a("s_nop 0")
        a(f"v_add_f32 v4, 1.0, v4")
        a(f"v_rcp_f32 v4, v4")
        a("s_nop 0")
        a(f"v_mul_f32 v{r}, v{r}, v4")
        round_one(a, r, 4)
    a("v_lshlrev_b32 v1, 2, v0")
    a("ds_write_b32 v1, v2")
    a("ds_write_b32 v1, v3 offset:1024")
    a("s_waitcnt lgkmcnt(0)")
    a("s_barrier")
    a("v_and_b32 v1, 31, v0")
    a("v_lshrrev_b32 v2, 5, v0")
    a("s_lshl_b32 s3, s2, 7")
    a("v_mul_u32_u24 v3, 56*5376, v2") if False else None
    a("s_mov_b32 s24, 301056")
    a("v_mul_lo_u32 v3, v2, s24")
    a("v_lshlrev_b32 v4, 2, v1")
    a("v_add3_u32 v3, v3, v4, s3")
    for kk in range(56):
        a(f"s_mov_b32 s25, {kk*5376}")
        a(f"buffer_load_dword v{32+kk}, v3, s[16:19], s25 offen")
    a("v_mul_u32_u24 v5, 224, v2")
    for q in range(14):
        a(f"ds_read_b128 v[{96+4*q}:{99+4*q}], v5 offset:{16*q}")
    a("v_mov_b32 v6, 0")
    a("v_mov_b32 v7, 0")
    a("s_waitcnt lgkmcnt(0)")
    for kk in range(56):
        a(f"s_waitcnt vmcnt({55-kk})")
        a(f"v_lshlrev_b32 v8, 16, v{32+kk}")
        a(f"v_and_b32 v9, 0xffff0000, v{32+kk}")
        a(f"v_fmac_f32 v6, v8, v{96+kk}")
        a(f"v_fmac_f32 v7, v9, v{96+kk}")
    a("v_lshlrev_b32 v8, 8, v2")
    a("v_lshlrev_b32 v9, 3, v1")
    a("v_add_u32 v8, v8, v9")
    a("ds_write_b64 v8, v[6:7] offset:2048")
    a("s_waitcnt lgkmcnt(0)")
    a("s_barrier")
    a("v_cmp_gt_u32 vcc, 64, v0")
    a("s_and_saveexec_b64 s[26:27], vcc")
    a(f"s_cbranch_execz {L_end}")
    a("v_lshlrev_b32 v1, 2, v0")
    for q in range(8):
        a(f"ds_read_b32 v{10+q}, v1 offset:{2048+q*256}")
    a("s_waitcnt lgkmcnt(0)")
    for q in range(1, 8):
        a(f"v_add_f32 v10, v10, v{10+q}")
    a("v_cvt_pk_bf16_f32 v10, v10, v10")
    a("v_lshlrev_b32 v1, 1, v0")
    a("v_add_u32 v1, s3, v1")
    a("buffer_store_short v10, v1, s[20:23], 0 offen sc1")
    a("s_waitcnt vmcnt(0)")
    if fused_label:
        a("s_cmp_ge_u32 s2, 14")
        a(f"s_cbranch_scc1 {L_end}")
        a("v_cmp_eq_u32 vcc, 0, v0")
        a("s_and_b64 exec, exec, vcc")
        a("v_mov_b32 v5, 0")
        a("v_mov_b32 v6, 1")
        a("buffer_atomic_add v6, v5, s[32:35], 0 offen sc1")
        a("s_waitcnt vmcnt(0)")
    a.label(L_end)
    a("s_endpgm")
    return kernel_desc(name, 160, 160)

def wave_sum(a, v, tmp):
    for off in (0x041F, 0x081F, 0x101F, 0x201F, 0x401F):
        a(f"ds_swizzle_b32 v{tmp}, v{v} offset:{off:#x}")
        a("s_waitcnt lgkmcnt(0)")
        a(f"v_add_f32 v{v}, v{v}, v{tmp}")
    a(f"v_mov_b32 v{tmp}, v{v}")
    a("s_nop 1")
    a(f"v_permlane32_swap_b32 v{v}, v{tmp}")
    a("s_nop 1")
    a(f"v_add_f32 v{v}, v{v}, v{tmp}")

def gen_ln(a, name, variant):
    fused = variant == 'F'
    if fused:
        variant = 'A'
        a.label(name)
        a("s_sub_u32 s2, s2, 42")
    else:
        kernel_header(a, name)
    L_end = a.newlabel("Lln_end")
    a(f"s_cmp_ge_u32 s2, 512")
    a(f"s_cbranch_scc1 {L_end}")
    if fused: a(f"s_load_dwordx2 s[28:29], s[0:1], {KA['dbg']}")
    a(f"s_load_dwordx2 s[4:5], s[0:1], {KA['x']}")
    a(f"s_load_dwordx2 s[8:9], s[0:1], {KA['ws']}")
    a("s_waitcnt lgkmcnt(0)")
    make_srd(a, 12, 4, SZ['x'])
    make_srd(a, 16, 8, 64 << 20)
    if fused: make_srd(a, 32, 28, 256)
    a("v_and_b32 v1, 63, v0")
    a("v_lshrrev_b32 v2, 6, v0")
    a("s_lshl_b32 s3, s2, 2")
    a("v_add_u32 v2, s3, v2")
    a("v_mul_u32_u24 v3, 896, v2")
    a("v_lshlrev_b32 v4, 4, v1")
    a("v_add_u32 v3, v3, v4")
    for r in range(10, 26):
        a(f"v_mov_b32 v{r}, 0")
    for r in range(40, 52):
        a(f"v_mov_b32 v{r}, 0")
    a("v_cmp_gt_u32 vcc, 56, v1")
    a("s_and_saveexec_b64 s[26:27], vcc")
    a("buffer_load_dwordx4 v[20:23], v3, s[12:15], 0 offen")
    si, ci = (0, 1) if variant == 'A' else (3, 4)
    if not fused:
        a(f"buffer_load_dwordx4 v[40:43], v4, s[16:19], 0 offen offset:{WS_MOD + si*896}")
        a(f"buffer_load_dwordx4 v[44:47], v4, s[16:19], 0 offen offset:{WS_MOD + ci*896}")
    if variant == 'B':
        a(f"buffer_load_dwordx4 v[48:51], v4, s[16:19], 0 offen offset:{WS_MOD + 2*896}")
        a("v_lshlrev_b32 v5, 1, v3")
        for p in range(8):
            a(f"s_mov_b32 s24, {WS_PART + p*2048*1792}")
            a(f"buffer_load_dwordx4 v[{64+8*p}:{67+8*p}], v5, s[16:19], s24 offen")
            a(f"buffer_load_dwordx4 v[{68+8*p}:{71+8*p}], v5, s[16:19], s24 offen offset:16")
    a("s_waitcnt vmcnt(0)")
    for i in range(4):
        a(f"v_lshlrev_b32 v{10+2*i}, 16, v{20+i}")
        a(f"v_and_b32 v{11+2*i}, 0xffff0000, v{20+i}")
    if variant == 'B':
        for p in range(1, 8):
            for e in range(8):
                a(f"v_add_f32 v{64+e}, v{64+e}, v{64+8*p+e}")
        for i in range(4):
            round_pair(a, 64+2*i, 65+2*i, 30)
            a(f"v_lshlrev_b32 v31, 16, v{48+i}")
            a(f"v_and_b32 v32, 0xffff0000, v{48+i}")
            a(f"v_mul_f32 v{64+2*i}, v{64+2*i}, v31")
            a(f"v_mul_f32 v{65+2*i}, v{65+2*i}, v32")
            round_pair(a, 64+2*i, 65+2*i, 30)
            a(f"v_add_f32 v{10+2*i}, v{10+2*i}, v{64+2*i}")
            a(f"v_add_f32 v{11+2*i}, v{11+2*i}, v{65+2*i}")
            a(f"v_cvt_pk_bf16_f32 v{20+i}, v{10+2*i}, v{11+2*i}")
            a(f"v_lshlrev_b32 v{10+2*i}, 16, v{20+i}")
            a(f"v_and_b32 v{11+2*i}, 0xffff0000, v{20+i}")
        a(f"s_mov_b32 s24, {WS_X2}")
        a("buffer_store_dwordx4 v[20:23], v3, s[16:19], s24 offen")
    a("s_mov_b64 exec, s[26:27]")
    a("v_add_f32 v26, v10, v11")
    for e in range(2, 8):
        a(f"v_add_f32 v26, v26, v{10+e}")
    wave_sum(a, 26, 27)
    a("v_mul_f32 v26, 0x3b124925, v26")
    a("v_mov_b32 v28, 0")
    for e in range(8):
        a(f"v_sub_f32 v29, v{10+e}, v26")
        a(f"v_fmac_f32 v28, v29, v29")
    a("v_cmp_gt_u32 vcc, 56, v1")
    a("s_nop 1")
    a("v_cndmask_b32 v28, 0, v28, vcc")
    wave_sum(a, 28, 27)
    a("v_mul_f32 v28, 0x3b124925, v28")
    round_pair(a, 26, 28, 27)
    a("v_add_f32 v28, 0x3727c5ac, v28")
    round_one(a, 28, 27)
    a("v_sqrt_f32 v28, v28")
    a("s_nop 0")
    round_one(a, 28, 27)
    a("v_rcp_f32 v28, v28")
    a("s_nop 0")
    if fused:
        Lnp = a.newlabel("Lnp"); Lp = a.newlabel("Lp"); Lpd = a.newlabel("Lpd")
        a("v_lshrrev_b32 v33, 6, v0")
        a("s_nop 0")
        a("v_readfirstlane_b32 s30, v33")
        a("s_nop 3")
        a("s_cmp_lg_u32 s30, 0")
        a(f"s_cbranch_scc1 {Lnp}")
        a("v_mov_b32 v33, 0")
        a.label(Lp)
        a("buffer_load_dword v34, v33, s[32:35], 0 offen sc1")
        a("s_waitcnt vmcnt(0)")
        a("v_readfirstlane_b32 s30, v34")
        a("s_nop 3")
        a("s_cmp_ge_u32 s30, 14")
        a(f"s_cbranch_scc1 {Lpd}")
        a("s_sleep 8")
        a(f"s_branch {Lp}")
        a.label(Lpd)
        a.label(Lnp)
        a("s_barrier")
        a("v_cmp_gt_u32 vcc, 56, v1")
        a("s_and_saveexec_b64 s[26:27], vcc")
        a(f"buffer_load_dwordx4 v[40:43], v4, s[16:19], 0 offen offset:{WS_MOD + si*896} sc1")
        a(f"buffer_load_dwordx4 v[44:47], v4, s[16:19], 0 offen offset:{WS_MOD + ci*896} sc1")
        a("s_waitcnt vmcnt(0)")
        a("s_mov_b64 exec, s[26:27]")
    for i in range(4):
        e0, e1 = 10+2*i, 11+2*i
        a(f"v_sub_f32 v{e0}, v{e0}, v26")
        a(f"v_sub_f32 v{e1}, v{e1}, v26")
        round_pair(a, e0, e1, 30)
        a(f"v_mul_f32 v{e0}, v{e0}, v28")
        a(f"v_mul_f32 v{e1}, v{e1}, v28")
        round_pair(a, e0, e1, 30)
        a(f"v_lshlrev_b32 v31, 16, v{44+i}")
        a(f"v_and_b32 v32, 0xffff0000, v{44+i}")
        a("v_add_f32 v31, 1.0, v31")
        a("v_add_f32 v32, 1.0, v32")
        round_pair(a, 31, 32, 30)
        a(f"v_mul_f32 v{e0}, v{e0}, v31")
        a(f"v_mul_f32 v{e1}, v{e1}, v32")
        round_pair(a, e0, e1, 30)
        a(f"v_lshlrev_b32 v31, 16, v{40+i}")
        a(f"v_and_b32 v32, 0xffff0000, v{40+i}")
        a(f"v_add_f32 v{e0}, v{e0}, v31")
        a(f"v_add_f32 v{e1}, v{e1}, v32")
        a(f"v_cvt_pk_bf16_f32 v{20+i}, v{e0}, v{e1}")
    a("v_cmp_gt_u32 vcc, 56, v1")
    a("s_and_saveexec_b64 s[26:27], vcc")
    a(f"s_mov_b32 s24, {WS_H1 if variant == 'A' else WS_H2}")
    a("v_lshrrev_b32 v30, 5, v2")
    a("v_mul_u32_u24 v30, 28, v30")
    a("v_lshrrev_b32 v31, 1, v1")
    a("v_add_u32 v30, v30, v31")
    a("v_lshlrev_b32 v30, 6, v30")
    a("v_and_b32 v31, 1, v1")
    a("v_lshlrev_b32 v31, 5, v31")
    a("v_and_b32 v32, 31, v2")
    a("v_add3_u32 v30, v30, v31, v32")
    a("v_lshlrev_b32 v30, 4, v30")
    a("buffer_store_dwordx4 v[20:23], v30, s[16:19], s24 offen")
    a("s_waitcnt vmcnt(0)")
    a.label(L_end)
    a("s_endpgm")
    return kernel_desc(name, 128 if variant == 'B' else 64, 128 if variant == 'B' else 64)
```

```python
from asmlib import *

def stream_loop(a, lq, R, groups2, dma_fn, end_fn, vtoggle, stoggle, vm_wait, nbuf, frag_base, sLOOP,
                PD=5, dma_every=2, pre_wait=None, label="Lsl", hook=None, bar_per_iter=False):
    flat = [(0, it) for it in groups2[0]] + [(1, it) for it in groups2[1]]
    N = len(flat)
    assert N % nbuf == 0, (N, nbuf)
    npre = PD - 1
    def do_reads(i):
        g, (reads, mf) = flat[i % N]
        fb = frag_base + 4*(i % nbuf)
        n = 0
        for fn in reads: n += fn(fb)
        lq.issue(('s', i % N), n)
    a(f"s_waitcnt vmcnt({pre_wait})")
    a("s_barrier")
    if hook: hook()
    for i in range(npre): do_reads(i)
    q0 = list(lq.q)
    a(f"s_mov_b32 s{sLOOP}, 0")
    L = a.newlabel(label)
    a.raw(".p2align 3")
    a.label(L)
    next_rd = npre
    pos = 0
    nA = len(groups2[0])
    for gp in range(2):
        grp = groups2[gp]
        if gp == 0 or not bar_per_iter:
            a(f"s_waitcnt vmcnt({vm_wait})")
            a("s_barrier")
        fill = dma_fn(gp)
        for k, (reads, mf) in enumerate(grp):
            fb = frag_base + 4*(pos % nbuf)
            tg = ('s', pos)
            if lq.has(tg):
                tags = {tg}
                if pos % 2 == 0 and lq.has(('s', (pos+1) % N)) and pos + 1 < N: tags.add(('s', pos+1))
                lq.need(tags)
            a(mf(fb))
            pos += 1
            while next_rd <= pos + PD - 2 and next_rd < N + npre:
                if next_rd == N:
                    for x in vtoggle: a(x)
                do_reads(next_rd); next_rd += 1
            if k % dma_every == 0:
                while fill:
                    x = fill.pop(0); a(x)
                    if not x.startswith("s_"): break
        for x in fill: a(x)
        for x in end_fn(gp): a(x)
    assert lq.q == q0, (lq.q, q0)
    for x in stoggle: a(x)
    a(f"s_add_u32 s{sLOOP}, s{sLOOP}, 1")
    a(f"s_cmp_lt_u32 s{sLOOP}, {R}")
    a(f"s_cbranch_scc1 {L}")
    a("s_waitcnt lgkmcnt(0)")
    lq.q = []
```

```python
import sys
sys.path.insert(0, "gen")
from asmlib import *
from k_small import gen_mod, gen_ln
from k_attn import gen_attn
from k_ffn import gen_gateup, gen_down

HDR = open("adaLN_cond__gqa_block_cached__swiglu_ffn__prompt.s.ref").read().split("; Override launch")[0]

KSTAMP = False
def main(path):
    a = Asm()
    descs = []
    a.raw('.amdgcn_target "amdgcn-amd-amdhsa--gfx950"')
    a.raw(".text")
    descs.append(gen_mod(a, "pre_kernel", fused_label="Lpre_ln"))
    gen_ln(a, "Lpre_ln", 'F')
    descs.append(gen_attn(a, "attn_kernel"))
    descs.append(gen_ln(a, "ln2_kernel", 'B'))
    descs.append(gen_gateup(a, "gateup_kernel"))
    descs.append(gen_down(a, "down_kernel"))
    launch = """; @launch kernel=pre_kernel grid=(554,1,1) block=(256,1,1) lds=4096
; @launch kernel=attn_kernel grid=(256,1,1) block=(256,1,1) lds=163840
; @launch kernel=ln2_kernel grid=(512,1,1) block=(256,1,1) lds=0
; @launch kernel=gateup_kernel grid=(224,1,1) block=(256,1,1) lds=65536
; @launch kernel=down_kernel grid=(224,1,1) block=(256,1,1) lds=131072
"""
    txt = a.text()
    if KSTAMP:
        import re
        names = ["pre_kernel","attn_kernel","ln2_kernel","gateup_kernel","down_kernel"]
        def st(ki, which):
            return f"""    s_load_dwordx2 s[96:97], s[0:1], 104
    s_memrealtime s[94:95]
    s_waitcnt lgkmcnt(0)
    s_add_u32 s96, s96, {(62<<20) + ki*65536 + which*8}
    s_addc_u32 s97, s97, 0
    s_mov_b32 s98, 65536
    s_mov_b32 s99, 0x00020000
    v_mov_b32 v{{A}}, s94
    v_mov_b32 v{{B}}, s95
    v_lshrrev_b32 v{{C}}, 6, v0
    v_lshlrev_b32 v{{C}}, 4, v{{C}}
    s_lshl_b32 s93, s2, 6
    v_add_u32 v{{C}}, s93, v{{C}}
    buffer_store_dwordx2 v[{{A}}:{{B}}], v{{C}}, s[96:99], 0 offen
    s_waitcnt vmcnt(0)
"""
        for ki, n in enumerate(names):
            txt = txt.replace(f"{n}:\n", f"{n}:\n" + st(ki,0).format(A=60,B=61,C=62), 1)
        ends = {"pre_kernel":"Lln_end","attn_kernel":"Lat_end","ln2_kernel":"Lln_end","gateup_kernel":"Lgu_end","down_kernel":"Ldn_end"}
        pos = 0
        for ki, n in enumerate(names):
            i0 = txt.index(f"{n}:\n", pos)
            m = re.compile(r"^" + ends[n] + r"_\d+:\n", re.M).search(txt, i0)
            ins = "    s_mov_b64 exec, -1\n" + st(ki,1).format(A=60,B=61,C=62)
            txt = txt[:m.start()] + ins + txt[m.start():]
            pos = m.end() + len(ins)
    out = HDR + launch + txt + '.section .rodata,"a"\n' + "".join(".p2align 6\n" + d for d in descs)
    open(path, "w").write(out)

if __name__ == "__main__":
    import k_attn
    if len(sys.argv) > 2 and sys.argv[2] == "stamp": k_attn.STAMP = True
    k_attn.EXP = set(sys.argv[3:])
    if len(sys.argv) > 2 and sys.argv[2] == "kstamp": KSTAMP = True
    main(sys.argv[1] if len(sys.argv) > 1 else "adaLN_cond__gqa_block_cached__swiglu_ffn__prompt.s")
```

```python
from asmlib import *
from stream import stream_loop
from k_fuse import *

S_K, S_V, S_WQ, S_WO, S_WS = 8, 12, 16, 20, 24
sWAVE, sKVH, sQB, sHSEL, sTSEL = 28, 29, 30, 31, 32
sKOFF, sVOFF, sLOOP, sC, sTHR, sW4K = 33, 34, 35, 36, 37, 38
sT0, sT1, sT2, sT3 = 40, 41, 42, 43

vLANE = 1
vKB = 2
vVB = 10
vKD = 14
vVD = 18
vM, vL, vS0, vS1 = 20, 21, 22, 23
vT = 24
vS = [40, 56]
vP = [72, 80]
vKF = 88
vVF = 104
vH = 128
vO = 128
aQACC = 0
aQ = 128

LDS_V = 65536
LDS_EX = 98304
THRESH = 0x5f800000
MBIAS = 0x42400000

STAMP = False
EXP = set()
WS_STAMP = 60 << 20

class LQ:
    def __init__(self, a):
        self.a = a
        self.q = []
    def issue(self, tag, n=1):
        for _ in range(n): self.q.append(tag)
    def has(self, tag):
        return tag in self.q
    def need(self, tags):
        idx = -1
        for i, t in enumerate(self.q):
            if t in tags: idx = i
        if idx < 0: return False
        n = len(self.q) - 1 - idx
        assert n <= 15, n
        self.a(f"s_waitcnt lgkmcnt({n})")
        self.q = self.q[idx+1:]
        return True

def mfma(d, A, B, C):
    return f"v_mfma_f32_32x32x16_bf16 {d}, {A}, {B}, {C}"

def stamp(a, idx):
    if not STAMP: return
    a("s_memtime s[60:61]" if idx < 100 else "s_memrealtime s[60:61]")
    idx = idx % 100
    a("s_waitcnt lgkmcnt(0)")
    a("v_mov_b32 v118, s60")
    a("v_mov_b32 v119, s61")
    a(f"s_lshl_b32 s62, s2, 9")
    a(f"s_lshl_b32 s63, s{sWAVE}, 7")
    a(f"s_add_u32 s62, s62, s63")
    a(f"s_add_u32 s62, s62, {WS_STAMP + idx*8}")
    a("v_mov_b32 v127, 0")
    a(f"buffer_store_dwordx2 v[118:119], v127, s[{S_WS}:{S_WS+3}], s62 offen")

def lane_fields(a):
    a(f"v_and_b32 v{vLANE}, 63, v0")
    a(f"v_lshrrev_b32 v120, 5, v{vLANE}")
    a(f"v_bfe_u32 v121, v{vLANE}, 2, 2")
    a(f"v_and_b32 v122, 3, v{vLANE}")
    a(f"v_bfe_u32 v123, v{vLANE}, 4, 1")
    a(f"v_and_b32 v124, 31, v{vLANE}")

def tr_base(a, dst, rowmul_h, pitch, dl, add):
    a(f"v_mul_u32_u24 v126, {rowmul_h}, v120")
    a(f"v_add_u32 v126, v126, v121")
    a(f"v_mul_u32_u24 v126, {pitch}, v126")
    a(f"v_xor_b32 v127, {dl}, v121")
    a(f"v_lshlrev_b32 v127, 6, v127")
    a(f"v_add_u32 v126, v126, v127")
    a(f"v_lshlrev_b32 v127, 5, v123")
    a(f"v_add_u32 v126, v126, v127")
    a(f"v_lshlrev_b32 v127, 3, v122")
    a(f"v_add_u32 v126, v126, v127")
    a(f"v_add_u32 v{dst}, {add}, v126")

def softmax_stream(sb, pb):
    S = vS[sb]; P = vP[pb]
    out = []
    pend = []
    for i in range(8):
        ta = vT + 2*(i % 3); tb = ta + 1
        cur = [f"v_cvt_pk_bf16_f32 v{ta}, 0, v{S+2*i}",
               f"v_cvt_pk_bf16_f32 v{tb}, 0, v{S+2*i+1}",
               f"v_fma_f32 v{ta}, v{ta}, s{sC}, -v{vM}",
               f"v_fma_f32 v{tb}, v{tb}, s{sC}, -v{vM}",
               f"v_exp_f32 v{ta}, v{ta}",
               f"v_exp_f32 v{tb}, v{tb}"]
        out.append(cur[0])
        out += pend
        out += cur[1:]
        if i == 0:
            pend = [f"v_add_f32 v{vS0}, v{ta}, v{tb}"]
        elif i == 1:
            pend = [f"v_add_f32 v{vS1}, v{ta}, v{tb}"]
        else:
            pend = [f"v_add_f32 v{vS0}, v{vS0}, v{ta}", f"v_add_f32 v{vS1}, v{vS1}, v{tb}"]
        pend.append(f"v_cvt_pk_bf16_f32 v{P+i}, v{ta}, v{tb}")
    out.append("s_nop 0")
    out += pend
    out.append(f"v_add_f32 v{vS0}, v{vS0}, v{vS1}")
    return out

def cost(ins):
    if ins.startswith("v_exp"): return 8
    return 4

def stream_gemm(a, lq, groups, dma_of_group, nbuf_frag, frag_base, PD=5, ndma_per=4, dma_every=2, pre_issued=3):
    G = len(groups)
    flat = []
    for g, grp in enumerate(groups):
        for it in grp: flat.append((g, it))
    N = len(flat)
    next_rd = 0
    def issue_reads(upto, gmax):
        nonlocal next_rd
        while next_rd < N and next_rd <= upto and flat[next_rd][0] <= gmax:
            g, (reads, mf) = flat[next_rd]
            fb = frag_base + 4*(next_rd % nbuf_frag)
            n = 0
            for fn in reads: n += fn(fb)
            lq.issue(('s', next_rd), n)
            next_rd += 1
    pos = 0
    for g, grp in enumerate(groups):
        issued = min(g + pre_issued, G)
        need = min(g + 1, G - 1)
        if 'sg_nodma' not in EXP: a(f"s_waitcnt vmcnt({ndma_per*(issued - need - 1)})")
        if 'sg_nobar' not in EXP: a("s_barrier")
        fill = dma_of_group(g + pre_issued) if g + pre_issued < G else []
        if 'sg_nodma' in EXP: fill = []
        issue_reads(pos + PD - 1, g + 1)
        for k, (reads, mf) in enumerate(grp):
            fb = frag_base + 4*(pos % nbuf_frag)
            if lq.has(('s', pos)):
                lq.need({('s', pos), ('s', pos+1)} if lq.has(('s', pos+1)) and (pos % 2 == 0) else {('s', pos)})
            a(mf(fb))
            pos += 1
            issue_reads(min(pos + PD - 1, pos + nbuf_frag - 1), g + 1)
            if k % dma_every == 0:
                while fill:
                    x = fill.pop(0); a(x)
                    if not x.startswith("s_"): break
        for x in fill: a(x)

def gen_attn(a, name):
    kernel_header(a, name)
    L_end = a.newlabel("Lat_end")
    a("s_cmp_ge_u32 s2, 256")
    a(f"s_cbranch_scc1 {L_end}")
    a(f"s_load_dwordx4 s[44:47], s[0:1], {KA['k']}")
    a(f"s_load_dwordx4 s[48:51], s[0:1], {KA['wq']}")
    a(f"s_load_dwordx2 s[52:53], s[0:1], {KA['ws']}")
    a(f"s_load_dwordx4 s[80:83], s[0:1], {KA['wg']}")
    a(f"s_load_dwordx2 s[84:85], s[0:1], {KA['wd']}")
    a("v_lshrrev_b32 v2, 6, v0")
    a("s_nop 0")
    a(f"v_readfirstlane_b32 s{sWAVE}, v2")
    a(f"s_and_b32 s{sKVH}, s2, 7")
    a(f"s_lshr_b32 s{sQB}, s2, 3")
    a("s_waitcnt lgkmcnt(0)")
    make_srd(a, S_K, 44, SZ['k'])
    make_srd(a, S_V, 46, SZ['v'])
    make_srd(a, S_WQ, 48, SZ['wq'])
    make_srd(a, S_WO, 50, SZ['wo'])
    make_srd(a, S_WS, 52, 128 << 20)
    make_srd(a, 64, 80, SZ['wg'])
    make_srd(a, 68, 82, SZ['wu'])
    make_srd(a, 72, 84, SZ['wd'])
    a(f"s_lshr_b32 s{sHSEL}, s{sWAVE}, 1")
    a(f"s_and_b32 s{sTSEL}, s{sWAVE}, 1")
    a(f"s_lshl_b32 s{sW4K}, s{sWAVE}, 12")
    a(f"s_mov_b32 s{sC}, 0x3db8aa3b")
    a(f"s_mov_b32 s{sTHR}, {THRESH:#x}")
    stamp(a, 0); stamp(a, 108)
    lane_fields(a)
    if 'nowarm' not in EXP:
        a(f"s_mul_i32 s{sT0}, s{sQB}, 14")
        a(f"s_lshl_b32 s{sT1}, s{sWAVE}, 2")
        a(f"s_add_u32 s{sT0}, s{sT0}, s{sT1}")
        a(f"s_lshl_b32 s{sT0}, s{sT0}, 13")
        a(f"s_lshl_b32 s{sT1}, s{sKVH}, 10")
        a(f"s_add_u32 s{sT0}, s{sT0}, s{sT1}")
        a(f"v_lshlrev_b32 v126, 4, v{vLANE}")
        for i in range(4):
            a(f"buffer_load_dwordx4 v[{88+4*i}:{91+4*i}], v126, s[{S_WQ}:{S_WQ+3}], s{sT0} offen")
            a(f"s_add_u32 s{sT0}, s{sT0}, 8192")
    vWQD = 112
    def wqd_regs():
        for jp in range(2):
            a(f"v_add_u32 v126, {2*jp}, v120")
            a(f"v_and_b32 v126, 3, v126")
            a(f"v_lshlrev_b32 v126, 2, v126")
            a(f"v_xor_b32 v126, v126, v124")
            a(f"v_lshlrev_b32 v126, 4, v126")
            a(f"v_lshlrev_b32 v127, 13, v120")
            a(f"v_add_u32 v{vWQD+jp}, v126, v127")
    wqd_regs()
    a(f"s_lshl_b32 s{sT2}, s{sKVH}, 10")
    a(f"s_lshl_b32 s{sT3}, s{sWAVE}, 16")
    a(f"s_add_u32 s{sT2}, s{sT2}, s{sT3}")
    sMA, sMB, sHB = 54, 55, 56
    def wq_dma(mreg, madd=0):
        out = []
        for hs in range(2):
            for jj in range(4):
                out.append(f"s_add_u32 m0, s{mreg}, {madd + hs*65536 + jj*1024}")
                out.append(f"s_add_u32 s{sT3}, s{sT2}, {jj*16384 + hs*512}")
                out.append(f"buffer_load_dwordx4 v{vWQD + (jj&1)}, s[{S_WQ}:{S_WQ+3}], s{sT3} offen lds")
        out.append(f"s_add_u32 s{sT2}, s{sT2}, {32*8192 if 'wq_lin' not in EXP else 1024}")
        if 'qp_nodma' in EXP and mreg != sW4K: out = []
        return out
    vHO = 111
    vBF = 72
    def b_load(gp):
        return [f"buffer_load_dwordx4 v[{vBF+8*gp}:{vBF+8*gp+3}], v{vHO}, s[{S_WS}:{S_WS+3}], s{sHB} offen",
                f"buffer_load_dwordx4 v[{vBF+8*gp+4}:{vBF+8*gp+7}], v{vHO}, s[{S_WS}:{S_WS+3}], s{sHB} offen offset:1024",
                f"s_add_u32 s{sHB}, s{sHB}, 2048"]
    a(f"v_lshlrev_b32 v{vHO}, 4, v{vLANE}")
    a(f"s_lshl_b32 s{sT0}, s{sQB}, 1")
    a(f"s_add_u32 s{sT0}, s{sT0}, s{sTSEL}")
    a(f"s_mul_i32 s{sHB}, s{sT0}, {28*1024}")
    a(f"s_add_u32 s{sHB}, s{sHB}, {WS_H1}")
    for x in wq_dma(sW4K, 0): a(x)
    for x in wq_dma(sW4K, 16384): a(x)
    for x in b_load(0): a(x)
    for x in wq_dma(sW4K, 32768): a(x)
    for x in b_load(1): a(x)
    a(f"s_add_u32 s{sMA}, s{sW4K}, {32768+16384}")
    a(f"s_mov_b32 s{sMB}, s{sW4K}")
    vQB = 114
    a(f"s_lshl_b32 s{sT1}, s{sHSEL}, 16")
    for dl in range(4):
        tr_base(a, vQB+dl, 8, 512, dl, f"s{sT1}")
    for r in range(128):
        a(f"v_mov_b32 v{vO+r}, 0")
    lq = LQ(a)
    groups = []
    for gp in range(2):
        grp = []
        slot = gp * 16384
        for ks in range(2):
            for dt in range(8):
                off = slot + ks*8192 + (dt >> 2)*256
                def rd(fb, off=off, dt=dt):
                    a(f"ds_read_b64_tr_b16 v[{fb}:{fb+1}], v{vQB + (dt&3)} offset:{off}")
                    a(f"ds_read_b64_tr_b16 v[{fb+2}:{fb+3}], v{vQB + (dt&3)} offset:{off+2048}")
                    return 2
                def mf(fb, dt=dt, b=vBF+8*gp+4*ks):
                    acc = f"v[{vO+16*dt}:{vO+16*dt+15}]"
                    return mfma(acc, f"v[{fb}:{fb+3}]", f"v[{b}:{b+3}]", acc)
                grp.append(([rd], mf))
        groups.append(grp)
    stream_loop(a, lq, 7, groups, lambda gp: wq_dma(sMA if gp == 0 else sMB), b_load,
                [f"v_xor_b32 v{vQB+dl}, 32768, v{vQB+dl}" for dl in range(4)],
                [f"s_xor_b32 s{sMA}, s{sMA}, 32768", f"s_xor_b32 s{sMB}, s{sMB}, 32768"],
                10, 8, 40, sLOOP, PD=6, dma_every=2, pre_wait=20, label="Lqp", hook=lambda: stamp(a, 7))
    a("s_waitcnt vmcnt(0)")
    a("s_barrier")
    stamp(a, 1)
    a("v_and_b32 v125, 15, v124")
    a(f"v_lshlrev_b32 v127, 9, v124")
    for sl in range(8):
        a(f"v_add_u32 v126, {2*sl}, v120")
        a(f"v_xor_b32 v126, v126, v125")
        a(f"v_lshl_add_u32 v{vKB+sl}, v126, 4, v127")
    a(f"s_lshl_b32 s{sT0}, s{sWAVE}, 3")
    a(f"v_add_u32 v125, s{sT0}, v120")
    a(f"v_lshlrev_b32 v127, 9, v125")
    for j in range(4):
        a(f"v_add_u32 v126, {2*j}, v125")
        a(f"v_and_b32 v126, 15, v126")
        a(f"v_xor_b32 v126, v126, v124")
        a(f"v_lshl_add_u32 v{vKD+j}, v126, 4, v127")
    for jp in range(2):
        a(f"v_add_u32 v126, {2*jp}, v120")
        a(f"v_and_b32 v126, 3, v126")
        a(f"v_lshlrev_b32 v126, 2, v126")
        a(f"v_xor_b32 v126, v126, v124")
        a(f"v_lshl_add_u32 v{vVD+jp}, v126, 4, v127")
    a(f"s_lshl_b32 s{sKOFF}, s{sKVH}, 20")
    a(f"s_lshl_b32 s{sVOFF}, s{sKVH}, 20")
    def k_dma_list(slot):
        out = [f"s_add_u32 m0, s{sW4K}, {slot*16384}"]
        for j in range(4):
            out.append(f"buffer_load_dwordx4 v{vKD+j}, s[{S_K}:{S_K+3}], s{sKOFF} offen offset:{j*1024} lds")
        out.append(f"s_add_u32 s{sKOFF}, s{sKOFF}, 16384")
        return out
    def v_dma_list(slot):
        out = [f"s_add_u32 m0, s{sW4K}, {LDS_V + slot*16384}"]
        for j in range(4):
            out.append(f"buffer_load_dwordx4 v{vVD+(j&1)}, s[{S_V}:{S_V+3}], s{sVOFF} offen offset:{j*1024} lds")
        out.append(f"s_add_u32 s{sVOFF}, s{sVOFF}, 16384")
        return out
    def emit_dma(lst):
        for i, l in enumerate(lst):
            a(l)
            if i == 0: a("s_nop 0")
    a(f"s_mul_i32 s{sT0}, s{sKVH}, {512*896}")
    a(f"s_mul_i32 s{sT1}, s{sQB}, {14*1024}")
    a(f"s_add_u32 s{sT0}, s{sT0}, s{sT1}")
    a(f"s_lshl_b32 s{sT1}, s{sWAVE}, 12")
    a(f"s_add_u32 s{sT0}, s{sT0}, s{sT1}")
    a(f"v_lshlrev_b32 v126, 4, v{vLANE}")
    for i in range(4):
        a(f"buffer_load_dwordx4 v[{vKF+4*i}:{vKF+4*i+3}], v126, s[{S_WO}:{S_WO+3}], s{sT0} offen offset:{i*1024}")
    emit_dma(k_dma_list(0)); emit_dma(k_dma_list(1)); emit_dma(v_dma_list(0)); emit_dma(k_dma_list(2)); emit_dma(v_dma_list(1))
    for dl in range(4):
        tr_base(a, vVB+dl, 4, 512, dl, LDS_V)
    for dt in range(8):
        for u in range(2):
            tb = vT + 4*((dt*2+u) % 4)
            b = vO + 16*dt + 8*u
            for e in range(4):
                a(f"v_cvt_pk_bf16_f32 v{tb+e}, v{b+2*e}, v{b+2*e+1}")
            a("s_nop 1")
            a(f"v_permlane32_swap_b32 v{tb}, v{tb+2}")
            a(f"v_permlane32_swap_b32 v{tb+1}, v{tb+3}")
            a("s_nop 0")
            for e in range(4):
                a(f"v_accvgpr_write_b32 a{aQ + (dt*2+u)*4 + e}, v{tb+e}")
    for r in range(8):
        a(f"v_mov_b32 v{vP[1]+r}, 0")
    a(f"v_mov_b32 v{vM}, 0xff800000")
    a(f"v_mov_b32 v{vL}, 0")

    slow_paths = []
    def k_read(kslot, s, fb):
        a(f"ds_read_b128 v[{fb}:{fb+3}], v{vKB + (s&7)} offset:{kslot*16384 + (s>>3)*256}")
    def v_read(vslot, j, fb):
        ks, dt = j // 8, j % 8
        off = vslot*16384 + ks*8192 + (dt >> 2)*256
        a(f"ds_read_b64_tr_b16 v[{fb}:{fb+1}], v{vVB + (dt&3)} offset:{off}")
        a(f"ds_read_b64_tr_b16 v[{fb+2}:{fb+3}], v{vVB + (dt&3)} offset:{off+4096}")

    VPRE = 4
    PD = 5
    BUDGET = 24

    def body(t, do_qk, do_pv, do_sm, next_pv, vm_wait, dma_k, dma_v, pre=VPRE):
        par = t & 1
        kslot = (t+1) % 4
        vslot = (t-1) % 4
        nvslot = t % 4
        Sn = vS[1-par]
        Pp = vP[1-par]
        if vm_wait is not None:
            a(f"s_waitcnt vmcnt({vm_wait})")
            if 'nobar' not in EXP: a("s_barrier")
        if do_qk and do_pv:
            order = ['P']*4 + ['Q','Q','P']*8 + ['P']*4
        elif do_qk:
            order = ['Q']*16
        else:
            order = ['P']*16
        qi = pi = 0
        seq = []
        for o in order:
            if o == 'Q': seq.append(('Q', qi)); qi += 1
            else: seq.append(('P', pi)); pi += 1
        nm = len(seq)
        ext = seq + ([('N', j) for j in range(VPRE)] if next_pv else [])
        fill = []
        if dma_k is not None and 'nodma' not in EXP: fill += k_dma_list(dma_k)
        if dma_v is not None and 'nodma' not in EXP: fill += v_dma_list(dma_v)
        sm = softmax_stream(par, par) if do_sm else []
        if 'nosm' in EXP: sm = sm[-1:]
        issued = set()
        if do_pv:
            for j in range(pre): issued.add(('P', j))
        done_m = set()
        def buf_free(ty, idx):
            if ty == 'Q': return idx < 4 or ('Q', idx-4) in done_m
            if ty == 'P': return idx < 4 or ('P', idx-4) in done_m
            return (not do_pv) or ('P', 12+idx) in done_m
        def issue_reads(upto):
            c = 0
            for p in range(min(upto+1, len(ext))):
                it = ext[p]
                if it in issued: continue
                ty, idx = it
                if not buf_free(ty, idx): break
                if ty == 'Q':
                    k_read(kslot, idx, vKF + 4*(idx % 4)); lq.issue(('K', idx)); c += 4
                elif ty == 'P':
                    v_read(vslot, idx, vVF + 4*(idx % 4)); lq.issue(('V', idx), 2); c += 8
                else:
                    v_read(nvslot, idx, vVF + 4*(idx % 4)); lq.issue(('V', idx), 2); c += 8
                issued.add(it)
            return c
        tagof = lambda it: ('K', it[1]) if it[0] == 'Q' else ('V', it[1])
        issue_reads(PD + 1 if do_pv else PD)
        smi = 0
        total_sm = sum(cost(x) for x in sm)
        sm_done = 0
        ndma = sum(1 for x in fill if not x.startswith("s_"))
        dma_gaps = set()
        if ndma:
            step = (nm - 4) / ndma
            dma_gaps = {int(1 + i*step) for i in range(ndma)}
        for n, it in enumerate(seq):
            ty, idx = it
            used = 0
            tg = tagof(it)
            if lq.has(tg):
                tags = {tg}
                if n + 1 < nm and lq.has(tagof(seq[n+1])) and n % 2 == 0: tags.add(tagof(seq[n+1]))
                lq.need(tags)
            if ty == 'Q':
                fb = vKF + 4*(idx % 4)
                C = "0" if idx == 0 else f"v[{Sn}:{Sn+15}]"
                a(mfma(f"v[{Sn}:{Sn+15}]", f"v[{fb}:{fb+3}]", f"a[{aQ+4*idx}:{aQ+4*idx+3}]", C))
            else:
                fb = vVF + 4*(idx % 4)
                ks, dt = idx // 8, idx % 8
                o = f"v[{vO+16*dt}:{vO+16*dt+15}]"
                a(mfma(o, f"v[{fb}:{fb+3}]", f"v[{Pp+4*ks}:{Pp+4*ks+3}]", o))
            done_m.add(it)
            used += issue_reads(n + PD)
            if n in dma_gaps:
                while fill:
                    x = fill.pop(0); a(x); used += 4
                    if x.startswith("s_add_u32 m0"):
                        if smi < len(sm): a(sm[smi]); sm_done += cost(sm[smi]); used += cost(sm[smi]); smi += 1
                        else: a("s_nop 0")
                    if not x.startswith("s_"): break
            tgt = total_sm * (n+1) / max(nm - 3, 1)
            while smi < len(sm) and (sm_done < tgt) and (used + cost(sm[smi]) <= BUDGET or sm_done < tgt - 24):
                a(sm[smi]); sm_done += cost(sm[smi]); used += cost(sm[smi]); smi += 1
        for x in fill:
            a(x)
            if x.startswith("s_add_u32 m0"): a("s_nop 0")
        while smi < len(sm):
            a(sm[smi]); smi += 1
        issue_reads(len(ext))
        assert all(e in issued for e in ext), (t, [e for e in ext if e not in issued])
        if do_sm:
            Ls = a.newlabel("Lslow"); Lr = a.newlabel("Lret")
            a(f"v_cmp_lt_f32 vcc, s{sTHR}, v{vS0}")
            a("s_nop 1")
            a(f"s_cbranch_vccnz {Ls}")
            a.label(Lr)
            a(f"v_add_f32 v{vL}, v{vL}, v{vS0}")
            slow_paths.append((Ls, Lr, par))

    stamp(a, 2); stamp(a, 110)
    a("s_waitcnt vmcnt(16)")
    a("s_barrier")
    body(-1, True, False, False, True, None, None, None)
    a("s_nop 7")
    Lloop = a.newlabel("Lloop")
    a(f"s_mov_b32 s{sLOOP}, 0")
    a.raw(".p2align 3")
    a.label(Lloop)
    q0 = list(lq.q)
    for t in (0, 1, 2, 3):
        body(t, True, True, True, True, 8, (t+3) % 4, (t+2) % 4)
    assert q0 == lq.q, (q0, lq.q)
    a(f"s_add_u32 s{sLOOP}, s{sLOOP}, 1")
    a(f"s_cmp_lt_u32 s{sLOOP}, 16")
    a(f"s_cbranch_scc1 {Lloop}")
    body(64, False, True, False, False, None, None, None)
    a("s_waitcnt vmcnt(0)")
    a("s_barrier")
    stamp(a, 3); stamp(a, 111)
    a(f"s_lshl_b32 s{sT0}, s2, 2")
    a(f"s_add_u32 s{sT0}, s{sT0}, s{sWAVE}")
    a(f"s_lshl_b32 s{sT0}, s{sT0}, 11")
    a(f"v_lshlrev_b32 v126, 4, v{vLANE}")
    for mi, srd in enumerate((64, 68, 72)):
        for i in range(2):
            a(f"buffer_load_dwordx4 v[{96+8*mi+4*i}:{99+8*mi+4*i}], v126, s[{srd}:{srd+3}], s{sT0} offen offset:{i*1024}")
    vWOD = 2
    for rr in range(4):
        a(f"v_xor_b32 v126, {rr<<2}, v{vLANE}")
        a(f"v_lshlrev_b32 v{vWOD+rr}, 4, v126")
    a(f"s_lshl_b32 s{sT2}, s{sKVH}, 9")
    a(f"s_lshl_b32 s{sT3}, s{sWAVE}, 2")
    a(f"s_add_u32 s{sT2}, s{sT2}, s{sT3}")
    a(f"s_mul_i32 s{sT2}, s{sT2}, 896")
    sMA, sMB, sPO, sPN = 54, 55, 56, 57
    def wo_dma(mreg, madd=0):
        out = []
        for rr in range(4):
            out.append(f"s_add_u32 m0, s{mreg}, {madd + rr*1024}")
            out.append(f"s_add_u32 s{sT3}, s{sT2}, {rr*896}")
            out.append(f"buffer_load_dwordx4 v{vWOD+rr}, s[{S_WO}:{S_WO+3}], s{sT3} offen lds")
        out.append(f"s_add_u32 s{sT2}, s{sT2}, {16*896}")
        if 'op_nodma' in EXP and mreg != sW4K: out = []
        return out
    for g in range(4):
        for x in wo_dma(sW4K, g*16384): a(x)
    a(f"s_add_u32 s{sMA}, s{sW4K}, 65536")
    a(f"s_add_u32 s{sMB}, s{sW4K}, 81920")
    a(f"s_mov_b32 s{sPO}, 0")
    a(f"s_mov_b32 s{sPN}, 32768")
    a(f"v_mov_b32 v{vT}, v{vL}")
    a("s_nop 1")
    a(f"v_permlane32_swap_b32 v{vL}, v{vT}")
    a("s_nop 1")
    a(f"v_add_f32 v{vL}, v{vL}, v{vT}")
    a(f"v_rcp_f32 v{vL}, v{vL}")
    a(f"v_lshlrev_b32 v6, 4, v{vLANE}")
    a(f"s_lshl_b32 s{sT0}, s{sTSEL}, 15")
    a(f"s_lshl_b32 s{sT1}, s{sHSEL}, 14")
    a(f"s_add_u32 s{sT0}, s{sT0}, {LDS_EX}")
    a(f"v_add_u32 v7, s{sT0}, v6")
    a(f"v_add_u32 v6, s{sT1}, v7")
    a(f"v_mov_b32 v{vL+1}, v{vL}")
    a(f"v_mov_b32 v{vL+2}, v{vL}")
    for i in range(16):
        tb = 40 + 4*(i % 8)
        for e in range(0, 8, 2):
            a(f"v_pk_mul_f32 v[{vO+8*i+e}:{vO+8*i+e+1}], v[{vO+8*i+e}:{vO+8*i+e+1}], v[{vL+1}:{vL+2}]")
        for e in range(4):
            a(f"v_cvt_pk_bf16_f32 v{tb+e}, v{vO+8*i+2*e}, v{vO+8*i+2*e+1}")
        a(f"ds_write_b128 v6, v[{tb}:{tb+3}] offset:{i*1024}")
    vOB = 8; vOC = 15
    a(f"s_mul_i32 s{sT0}, s{sHSEL}, 7")
    a(f"v_lshl_add_u32 v126, v120, 2, v121")
    a(f"v_lshlrev_b32 v126, 10, v126")
    a(f"v_lshl_add_u32 v126, v123, 5, v126")
    a(f"v_lshl_add_u32 v126, v122, 3, v126")
    for i in range(7):
        a(f"s_add_u32 s{sT3}, s{sT0}, {i}")
        a(f"v_xor_b32 v125, s{sT3}, v121")
        a(f"v_lshl_add_u32 v{vOB+i}, v125, 6, v126")
        a(f"v_mov_b32 v{vOC+i}, v{vOB+i}")
    for r in range(112):
        a(f"v_mov_b32 v{vO+r}, 0")
    a("s_waitcnt lgkmcnt(0)")
    stamp(a, 4)
    lq.q = []
    groups = []
    for gp in range(2):
        grp = []
        for i in range(7):
            def rd(fb, i=i, gp=gp):
                n = 2
                if i == 0:
                    a(f"ds_read_b128 v[{96+4*gp}:{99+4*gp}], v7 offset:{gp*1024}"); n = 3
                a(f"ds_read_b64_tr_b16 v[{fb}:{fb+1}], v{vOC+i} offset:{gp*16384}")
                a(f"ds_read_b64_tr_b16 v[{fb+2}:{fb+3}], v{vOC+i} offset:{gp*16384+8192}")
                return n
            def mf(fb, i=i, gp=gp):
                acc = f"v[{vO+16*i}:{vO+16*i+15}]"
                return mfma(acc, f"v[{fb}:{fb+3}]", f"v[{96+4*gp}:{99+4*gp}]", acc)
            grp.append(([rd], mf))
        groups.append(grp)
    stream_loop(a, lq, 16, groups, lambda gp: wo_dma(sMA if gp == 0 else sMB), lambda gp: [],
                [f"v_add_u32 v{vOC+i}, s{sPN}, v{vOB+i}" for i in range(7)] + ["v_add_u32 v7, 2048, v7"],
                [f"s_add_u32 s{sMA}, s{sW4K}, s{sPO}", f"s_add_u32 s{sMB}, s{sMA}, 16384",
                 f"s_mov_b32 s{sPO}, s{sPN}",
                 f"s_add_u32 s{sPN}, s{sPN}, 32768", f"s_cmp_eq_u32 s{sPN}, 98304", f"s_cselect_b32 s{sPN}, 0, s{sPN}"],
                4, 7, 40, sLOOP, PD=5, dma_every=1, pre_wait=12, label="Lop", bar_per_iter=True)
    a("s_waitcnt vmcnt(0)")
    stamp(a, 12)
    a("s_barrier")
    a(f"s_mul_i32 s{sT0}, s{sWAVE}, {32*912}")
    a(f"v_mul_u32_u24 v6, 912, v124")
    a(f"v_lshl_add_u32 v6, v120, 4, v6")
    a(f"v_add_u32 v6, s{sT0}, v6")
    a("s_nop 7")
    a("s_nop 4")
    for i in range(7):
        for q in range(4):
            r0 = vO + 16*i + 4*q
            a(f"ds_write_b128 v6, v[{r0}:{r0+3}] offset:{i*128+q*32}")
    a(f"v_lshlrev_b32 v7, 4, v{vLANE}")
    a(f"v_add_u32 v6, s{sT0}, v7")
    a(f"s_lshl_b32 s{sT0}, s{sQB}, 6")
    a(f"s_lshl_b32 s{sT1}, s{sTSEL}, 5")
    a(f"s_add_u32 s{sT0}, s{sT0}, s{sT1}")
    a(f"s_lshl_b32 s{sT1}, s{sKVH}, 11")
    a(f"s_add_u32 s{sT0}, s{sT0}, s{sT1}")
    a(f"s_mul_i32 s{sT0}, s{sT0}, 1792")
    a(f"s_mul_i32 s{sT1}, s{sHSEL}, 896")
    a(f"s_add_u32 s{sT1}, s{sT1}, {WS_PART}")
    a(f"s_add_u32 s{sT1}, s{sT1}, s{sT0}")
    a(f"v_cmp_gt_u32 vcc, 56, v{vLANE}")
    a("s_waitcnt lgkmcnt(0)")
    a("s_and_saveexec_b64 s[58:59], vcc")
    for half in range(2):
        for rr in range(16):
            a(f"ds_read_b128 v[{vO+4*rr}:{vO+4*rr+3}], v6 offset:{(half*16+rr)*912}")
        for rr in range(16):
            a(f"s_waitcnt lgkmcnt({15-rr})")
            a(f"buffer_store_dwordx4 v[{vO+4*rr}:{vO+4*rr+3}], v7, s[{S_WS}:{S_WS+3}], s{sT1} offen")
            a(f"s_add_u32 s{sT1}, s{sT1}, 1792")
        if half == 0: a("s_nop 1")
    a("s_mov_b64 exec, s[58:59]")
    stamp(a, 5)
    a("s_waitcnt vmcnt(0)")
    stamp(a, 6); stamp(a, 109)
    a("s_waitcnt vmcnt(0)")
    a.label(L_end)
    a("s_endpgm")
    for (Ls, Lr, par) in slow_paths:
        S = vS[par]
        a.label(Ls)
        a(f"v_max3_f32 v{vT}, v{S}, v{S+1}, v{S+2}")
        for i in range(3, 15, 2):
            a(f"v_max3_f32 v{vT}, v{vT}, v{S+i}, v{S+i+1}")
        a(f"v_max_f32 v{vT}, v{vT}, v{S+15}")
        a(f"v_mov_b32 v{vT+1}, v{vT}")
        a("s_nop 1")
        a(f"v_permlane32_swap_b32 v{vT}, v{vT+1}")
        a("s_nop 1")
        a(f"v_max_f32 v{vT}, v{vT}, v{vT+1}")
        a(f"v_cvt_pk_bf16_f32 v{vT}, 0, v{vT}")
        a(f"v_mov_b32 v{vT+2}, {MBIAS:#x}")
        a(f"v_fma_f32 v{vT}, v{vT}, s{sC}, v{vT+2}")
        a(f"v_max_f32 v{vT}, v{vT}, v{vM}")
        a(f"v_sub_f32 v{vT+1}, v{vM}, v{vT}")
        a(f"v_exp_f32 v{vT+1}, v{vT+1}")
        a(f"v_mov_b32 v{vM}, v{vT}")
        a("s_nop 7")
        a("s_nop 7")
        a(f"v_mul_f32 v{vL}, v{vL}, v{vT+1}")
        for r in range(128):
            a(f"v_mul_f32 v{vO+r}, v{vO+r}, v{vT+1}")
        for x in softmax_stream(par, par):
            a(x)
        a("s_nop 1")
        a(f"s_branch {Lr}")
    return kernel_desc(name, 256+192, 256)
```

```python
from asmlib import *
from k_attn import LQ, mfma, lane_fields, tr_base
from stream import stream_loop

import k_attn
def fstamp(a, idx, srd, base):
    if 'fstamp' not in k_attn.EXP: return
    a("s_memtime s[60:61]")
    a("s_waitcnt lgkmcnt(0)")
    a("v_mov_b32 v118, s60")
    a("v_mov_b32 v119, s61")
    a(f"s_lshl_b32 s62, s2, 9")
    a(f"s_lshl_b32 s63, s28, 7")
    a(f"s_add_u32 s62, s62, s63")
    a(f"s_add_u32 s62, s62, {base + idx*8}")
    a("v_mov_b32 v127, 0")
    a(f"buffer_store_dwordx2 v[118:119], v127, s[{srd}:{srd+3}], s62 offen")

def gen_gateup(a, name):
    S_G, S_U, S_WS = 8, 12, 16
    sWAVE, sTB, sFS, sW2K = 28, 29, 30, 33
    sT0, sT1, sT2, sT3 = 40, 41, 42, 43
    vH = 128
    kernel_header(a, name)
    L_end = a.newlabel("Lgu_end")
    a("s_cmp_ge_u32 s2, 224")
    a(f"s_cbranch_scc1 {L_end}")
    a(f"s_load_dwordx4 s[44:47], s[0:1], {KA['wg']}")
    a(f"s_load_dwordx2 s[52:53], s[0:1], {KA['ws']}")
    a("v_lshrrev_b32 v2, 6, v0")
    a("s_nop 0")
    a(f"v_readfirstlane_b32 s{sWAVE}, v2")
    a(f"s_and_b32 s{sTB}, s2, 15")
    a(f"s_lshr_b32 s{sFS}, s2, 4")
    a("s_waitcnt lgkmcnt(0)")
    make_srd(a, S_G, 44, SZ['wg'])
    make_srd(a, S_U, 46, SZ['wu'])
    make_srd(a, S_WS, 52, 64 << 20)
    a(f"s_lshl_b32 s{sW2K}, s{sWAVE}, 11")
    fstamp(a, 0, S_WS, 58<<20)
    lane_fields(a)
    vWD = 112
    a("v_lshrrev_b32 v126, 4, v1")
    a("v_lshlrev_b32 v127, 2, v126")
    a("v_and_b32 v125, 15, v1")
    a("v_xor_b32 v125, v125, v127")
    a("v_lshlrev_b32 v125, 4, v125")
    a("v_mul_u32_u24 v126, 3584, v126")
    a(f"v_add_u32 v{vWD}, v125, v126")
    a(f"s_lshl_b32 s{sT2}, s{sFS}, 8")
    a(f"s_mul_i32 s{sT3}, s{sWAVE}, {8*3584}")
    a(f"s_add_u32 s{sT2}, s{sT2}, s{sT3}")
    sMA, sMB, sHB, sLOOP = 54, 55, 56, 35
    def dma(mreg, madd=0):
        out = []
        for gu in range(2):
            srd = S_G if gu == 0 else S_U
            for jj in range(2):
                out.append(f"s_add_u32 m0, s{mreg}, {madd + gu*8192 + jj*1024}")
                out.append(f"s_add_u32 s{sT3}, s{sT2}, {jj*4*3584}")
                out.append(f"buffer_load_dwordx4 v{vWD}, s[{srd}:{srd+3}], s{sT3} offen lds")
        out.append(f"s_add_u32 s{sT2}, s{sT2}, {32*3584}")
        return out
    a(f"s_lshl_b32 s{sT0}, s{sTB}, 7")
    a(f"s_lshl_b32 s{sT1}, s{sWAVE}, 5")
    a(f"s_add_u32 s{sT0}, s{sT0}, s{sT1}")
    a(f"v_add_u32 v110, s{sT0}, v124")
    a(f"v_lshlrev_b32 v111, 4, v1")
    a(f"s_lshl_b32 s{sT0}, s{sTB}, 2")
    a(f"s_add_u32 s{sT0}, s{sT0}, s{sWAVE}")
    a(f"s_mul_i32 s{sHB}, s{sT0}, {28*1024}")
    a(f"s_add_u32 s{sHB}, s{sHB}, {WS_H2}")
    def b_load(gp):
        return [f"buffer_load_dwordx4 v[{vH+8*gp}:{vH+8*gp+3}], v111, s[{S_WS}:{S_WS+3}], s{sHB} offen",
                f"buffer_load_dwordx4 v[{vH+8*gp+4}:{vH+8*gp+7}], v111, s[{S_WS}:{S_WS+3}], s{sHB} offen offset:1024",
                f"s_add_u32 s{sHB}, s{sHB}, 2048"]
    for x in dma(sW2K, 0): a(x)
    for x in dma(sW2K, 16384): a(x)
    for x in b_load(0): a(x)
    for x in dma(sW2K, 32768): a(x)
    for x in b_load(1): a(x)
    a(f"s_add_u32 s{sMA}, s{sW2K}, {32768+16384}")
    a(f"s_mov_b32 s{sMB}, s{sW2K}")
    vQB = 114
    for dl in range(4):
        tr_base(a, vQB+dl, 8, 256, dl, 0)
    for r in range(128):
        a(f"v_accvgpr_write_b32 a{r}, 0")
    lq = LQ(a)
    groups = []
    for gp in range(2):
        grp = []
        for ks in range(2):
            for gu in range(2):
                for i in range(4):
                    off = gp*16384 + gu*8192 + ks*4096
                    def rd(fb, i=i, off=off):
                        a(f"ds_read_b64_tr_b16 v[{fb}:{fb+1}], v{vQB+i} offset:{off}")
                        a(f"ds_read_b64_tr_b16 v[{fb+2}:{fb+3}], v{vQB+i} offset:{off+1024}")
                        return 2
                    def mf(fb, gu=gu, i=i, b=vH+8*gp+4*ks):
                        ac = (gu*4 + i)*16
                        acc = f"a[{ac}:{ac+15}]"
                        return mfma(acc, f"v[{fb}:{fb+3}]", f"v[{b}:{b+3}]", acc)
                    grp.append(([rd], mf))
        groups.append(grp)
    stream_loop(a, lq, 7, groups, lambda gp: dma(sMA if gp == 0 else sMB), b_load,
                [f"v_xor_b32 v{vQB+dl}, 32768, v{vQB+dl}" for dl in range(4)],
                [f"s_xor_b32 s{sMA}, s{sMA}, 32768", f"s_xor_b32 s{sMB}, s{sMB}, 32768"],
                6, 8, 40, sLOOP, PD=6, dma_every=3, pre_wait=12, label="Lgu", hook=lambda: fstamp(a, 1, S_WS, 58<<20))
    fstamp(a, 2, S_WS, 58<<20)
    a(f"v_mul_u32_u24 v6, 3584, v110")
    a(f"v_lshlrev_b32 v7, 4, v120")
    a(f"v_add_u32 v6, v6, v7")
    a(f"s_lshl_b32 s{sT0}, s{sFS}, 8")
    a(f"s_add_u32 s{sT0}, s{sT0}, {WS_ACT}")
    a("s_nop 7")
    a("s_nop 7")
    for i in range(4):
        for u in range(2):
            ob = 24 + 4*((i*2+u) % 4)
            for g in range(2):
                q = 2*u + g
                for e in range(4):
                    a(f"v_accvgpr_read_b32 v{10+e}, a{i*16+4*q+e}")
                    a(f"v_accvgpr_read_b32 v{14+e}, a{64+i*16+4*q+e}")
                for e in range(4):
                    a(f"v_cvt_pk_bf16_f32 v{10+e}, 0, v{10+e}")
                    a(f"v_cvt_pk_bf16_f32 v{14+e}, 0, v{14+e}")
                for e in range(4):
                    a(f"v_mul_f32 v{18+e}, 0xbfb8aa3b, v{10+e}")
                for e in range(4):
                    a(f"v_exp_f32 v{18+e}, v{18+e}")
                for e in range(4):
                    a(f"v_add_f32 v{18+e}, 1.0, v{18+e}")
                for e in range(4):
                    a(f"v_rcp_f32 v{18+e}, v{18+e}")
                for e in range(4):
                    a(f"v_mul_f32 v{10+e}, v{10+e}, v{18+e}")
                for e in range(4):
                    a(f"v_cvt_pk_bf16_f32 v{10+e}, 0, v{10+e}")
                for e in range(4):
                    a(f"v_mul_f32 v{10+e}, v{10+e}, v{14+e}")
                a(f"v_cvt_pk_bf16_f32 v{ob+2*g}, v10, v11")
                a(f"v_cvt_pk_bf16_f32 v{ob+2*g+1}, v12, v13")
            a("s_nop 1")
            a(f"v_permlane32_swap_b32 v{ob}, v{ob+2}")
            a(f"v_permlane32_swap_b32 v{ob+1}, v{ob+3}")
            a("s_nop 0")
            a(f"buffer_store_dwordx4 v[{ob}:{ob+3}], v6, s[{S_WS}:{S_WS+3}], s{sT0} offen offset:{i*64+u*32}")
    fstamp(a, 3, S_WS, 58<<20)
    a("s_waitcnt vmcnt(0)")
    fstamp(a, 4, S_WS, 58<<20)
    a("s_waitcnt vmcnt(0)")
    a.label(L_end)
    a("s_endpgm")
    return kernel_desc(name, 144+128, 144)

def gen_down(a, name):
    S_D, S_WS, S_OUT = 8, 12, 16
    sWAVE, sTB, sNB, sNS, sTSEL, sW4K = 28, 29, 30, 31, 32, 33
    sT0, sT1, sT2, sT3, sA = 40, 41, 42, 43, 39
    kernel_header(a, name)
    L_end = a.newlabel("Ldn_end")
    a("s_cmp_ge_u32 s2, 224")
    a(f"s_cbranch_scc1 {L_end}")
    a(f"s_load_dwordx2 s[44:45], s[0:1], {KA['wd']}")
    a(f"s_load_dwordx2 s[46:47], s[0:1], {KA['out']}")
    a(f"s_load_dwordx2 s[52:53], s[0:1], {KA['ws']}")
    a("v_lshrrev_b32 v2, 6, v0")
    a("s_nop 0")
    a(f"v_readfirstlane_b32 s{sWAVE}, v2")
    a(f"s_and_b32 s{sTB}, s2, 7")
    a(f"s_bfe_u32 s{sT0}, s2, 0x10004")
    a(f"s_lshl_b32 s{sT0}, s{sT0}, 3")
    a(f"s_add_u32 s{sTB}, s{sTB}, s{sT0}")
    a(f"s_lshl_b32 s{sTB}, s{sTB}, 1")
    a(f"s_bfe_u32 s{sT0}, s2, 0x10003")
    a(f"s_add_u32 s{sTB}, s{sTB}, s{sT0}")
    a(f"s_lshr_b32 s{sNB}, s2, 5")
    a("s_waitcnt lgkmcnt(0)")
    make_srd(a, S_D, 44, SZ['wd'])
    make_srd(a, S_OUT, 46, SZ['out'])
    make_srd(a, S_WS, 52, 64 << 20)
    a(f"s_lshr_b32 s{sNS}, s{sWAVE}, 1")
    a(f"s_and_b32 s{sTSEL}, s{sWAVE}, 1")
    a(f"s_lshl_b32 s{sW4K}, s{sWAVE}, 12")
    fstamp(a, 0, S_WS, 59<<20)
    lane_fields(a)
    a(f"s_lshl_b32 s{sT0}, s{sTB}, 6")
    a(f"s_lshl_b32 s{sT1}, s{sTSEL}, 5")
    a(f"s_add_u32 s{sT1}, s{sT0}, s{sT1}")
    a(f"v_add_u32 v110, s{sT1}, v124")
    a(f"v_lshrrev_b32 v126, 3, v1")
    a(f"v_bfe_u32 v127, v126, 1, 1")
    a(f"v_lshlrev_b32 v127, 2, v127")
    a(f"v_and_b32 v125, 7, v1")
    a(f"v_xor_b32 v125, v125, v127")
    a(f"v_lshlrev_b32 v125, 4, v125")
    a(f"v_mul_u32_u24 v126, 896, v126")
    a(f"v_add_u32 v112, v125, v126")
    a(f"s_lshl_b32 s{sT2}, s{sNB}, 7")
    a(f"s_mul_i32 s{sT3}, s{sWAVE}, {32*896}")
    a(f"s_add_u32 s{sT2}, s{sT2}, s{sT3}")
    a(f"v_lshrrev_b32 v126, 4, v1")
    a(f"v_and_b32 v125, 15, v1")
    for jj in range(4):
        a(f"v_add_u32 v127, {4*jj}, v126")
        a(f"v_xor_b32 v118, v125, v127")
        a(f"v_lshlrev_b32 v118, 4, v118")
        a(f"v_mul_u32_u24 v127, 3584, v127")
        a(f"v_add_u32 v{114+jj}, v118, v127")
    a(f"s_lshl_b32 s{sA}, s{sWAVE}, 4")
    a(f"s_add_u32 s{sA}, s{sA}, s{sT0}")
    a(f"s_mul_i32 s{sA}, s{sA}, 3584")
    a(f"s_add_u32 s{sA}, s{sA}, {WS_ACT}")
    sMA, sMB, sLOOP = 54, 55, 35
    def dma(mreg, madd=0):
        out = []
        for jj in range(4):
            out.append(f"s_add_u32 m0, s{mreg}, {madd + jj*1024}")
            out.append(f"s_add_u32 s{sT3}, s{sT2}, {jj*8*896}")
            out.append(f"buffer_load_dwordx4 v112, s[{S_D}:{S_D+3}], s{sT3} offen lds")
        for jj in range(4):
            out.append(f"s_add_u32 m0, s{mreg}, {madd + 65536 + jj*1024}")
            out.append(f"s_nop 0")
            out.append(f"buffer_load_dwordx4 v{114+jj}, s[{S_WS}:{S_WS+3}], s{sA} offen lds")
        out.append(f"s_add_u32 s{sT2}, s{sT2}, {128*896}")
        out.append(f"s_add_u32 s{sA}, s{sA}, 256")
        return out
    for t in range(3):
        for x in dma(sW4K, t*16384): a(x)
    a(f"s_add_u32 s{sMA}, s{sW4K}, {32768+16384}")
    a(f"s_mov_b32 s{sMB}, s{sW4K}")
    a(f"v_lshl_add_u32 v126, v120, 3, v121")
    a(f"v_lshlrev_b32 v126, 7, v126")
    a(f"v_bfe_u32 v127, v121, 1, 1")
    a(f"v_xor_b32 v127, s{sNS}, v127")
    a(f"v_lshlrev_b32 v127, 6, v127")
    a(f"v_add_u32 v126, v126, v127")
    a(f"v_lshlrev_b32 v127, 5, v123")
    a(f"v_add_u32 v126, v126, v127")
    a(f"v_lshlrev_b32 v127, 3, v122")
    a(f"v_add_u32 v113, v126, v127")
    a(f"s_lshl_b32 s{sT1}, s{sTSEL}, 13")
    a(f"s_add_u32 s{sT1}, s{sT1}, 65536")
    a(f"v_lshlrev_b32 v127, 8, v124")
    a(f"v_add_u32 v127, s{sT1}, v127")
    a(f"v_and_b32 v125, 15, v124")
    for s in range(8):
        a(f"v_add_u32 v126, {2*s}, v120")
        a(f"v_xor_b32 v126, v126, v125")
        a(f"v_lshl_add_u32 v{100+s}, v126, 4, v127")
    for r in range(16):
        a(f"v_mov_b32 v{80+r}, 0")
    lq = LQ(a)
    groups = []
    for gp in range(2):
        grp = []
        slot = gp*16384
        for s_ in range(8):
            def rd(fb, s_=s_, slot=slot):
                fb2 = fb + 88
                a(f"ds_read_b64_tr_b16 v[{fb}:{fb+1}], v113 offset:{slot + s_*2048}")
                a(f"ds_read_b64_tr_b16 v[{fb+2}:{fb+3}], v113 offset:{slot + s_*2048 + 512}")
                a(f"ds_read_b128 v[{fb2}:{fb2+3}], v{100+s_} offset:{slot}")
                return 3
            def mf(fb):
                fb2 = fb + 88
                return mfma("v[80:95]", f"v[{fb}:{fb+3}]", f"v[{fb2}:{fb2+3}]", "v[80:95]")
            grp.append(([rd], mf))
        groups.append(grp)
    stream_loop(a, lq, 7, groups, lambda gp: dma(sMA if gp == 0 else sMB), lambda gp: [],
                ["v_xor_b32 v113, 32768, v113"] + [f"v_xor_b32 v{100+i}, 32768, v{100+i}" for i in range(8)],
                [f"s_xor_b32 s{sMA}, s{sMA}, 32768", f"s_xor_b32 s{sMB}, s{sMB}, 32768"],
                8, 8, 40, sLOOP, PD=5, dma_every=1, pre_wait=16, label="Ldn", hook=lambda: fstamp(a, 1, S_WS, 59<<20))
    fstamp(a, 2, S_WS, 59<<20)
    a(f"s_lshl_b32 s{sT0}, s{sNB}, 7")
    a(f"s_lshl_b32 s{sT1}, s{sNS}, 6")
    a(f"s_add_u32 s{sT0}, s{sT0}, s{sT1}")
    a(f"v_mul_u32_u24 v6, 896, v110")
    a(f"v_lshlrev_b32 v7, 3, v120")
    a(f"v_add_u32 v8, v6, v7")
    a(f"s_add_u32 s{sT1}, s{sT0}, {WS_X2}")
    a(f"s_add_u32 s{sT2}, s{sT0}, {WS_MOD + 5*896}")
    for q in range(4):
        a(f"buffer_load_dwordx2 v[{10+2*q}:{11+2*q}], v8, s[{S_WS}:{S_WS+3}], s{sT1} offen offset:{q*16}")
        a(f"buffer_load_dwordx2 v[{20+2*q}:{21+2*q}], v7, s[{S_WS}:{S_WS+3}], s{sT2} offen offset:{q*16}")
    a("s_waitcnt vmcnt(0)")
    a("s_nop 7")
    a(f"v_lshlrev_b32 v7, 4, v120")
    a(f"v_add_u32 v6, v6, v7")
    for u in range(2):
        ob = 60 + 4*u
        for g in range(2):
            q = 2*u + g
            for p in range(2):
                f0, f1 = 80+4*q+2*p, 81+4*q+2*p
                a(f"v_cvt_pk_bf16_f32 v31, 0, v{f0}")
                a(f"v_cvt_pk_bf16_f32 v32, 0, v{f1}")
                a(f"v_lshlrev_b32 v33, 16, v{20+2*q+p}")
                a(f"v_and_b32 v34, 0xffff0000, v{20+2*q+p}")
                a(f"v_mul_f32 v31, v31, v33")
                a(f"v_mul_f32 v32, v32, v34")
                a(f"v_cvt_pk_bf16_f32 v31, 0, v31")
                a(f"v_cvt_pk_bf16_f32 v32, 0, v32")
                a(f"v_lshlrev_b32 v33, 16, v{10+2*q+p}")
                a(f"v_and_b32 v34, 0xffff0000, v{10+2*q+p}")
                a(f"v_add_f32 v31, v31, v33")
                a(f"v_add_f32 v32, v32, v34")
                a(f"v_cvt_pk_bf16_f32 v{ob+2*g+p}, v31, v32")
        a("s_nop 1")
        a(f"v_permlane32_swap_b32 v{ob}, v{ob+2}")
        a(f"v_permlane32_swap_b32 v{ob+1}, v{ob+3}")
        a("s_nop 0")
        a(f"buffer_store_dwordx4 v[{ob}:{ob+3}], v6, s[{S_OUT}:{S_OUT+3}], s{sT0} offen offset:{u*32}")
    fstamp(a, 3, S_WS, 59<<20)
    a("s_waitcnt vmcnt(0)")
    fstamp(a, 4, S_WS, 59<<20)
    a("s_waitcnt vmcnt(0)")
    a.label(L_end)
    a("s_endpgm")
    return kernel_desc(name, 168, 168)
```

```python
from asmlib import *

LOG2E = 0x3fb8aa3b

def round_pair(a, va, vb, tmp):
    a(f"v_cvt_pk_bf16_f32 v{tmp}, v{va}, v{vb}")
    a(f"v_lshlrev_b32 v{va}, 16, v{tmp}")
    a(f"v_and_b32 v{vb}, 0xffff0000, v{tmp}")

def round_one(a, va, tmp):
    a(f"v_cvt_pk_bf16_f32 v{tmp}, v{va}, v{va}")
    a(f"v_lshlrev_b32 v{va}, 16, v{tmp}")

def gen_mod(a, name, fused_label=None):
    kernel_header(a, name)
    L_end = a.newlabel("Lmod_end")
    a(f"s_cmp_ge_u32 s2, 42")
    a(f"s_cbranch_scc1 {fused_label or L_end}")
    a(f"s_load_dwordx2 s[28:29], s[0:1], {KA['dbg']}")
    a(f"s_load_dwordx2 s[4:5], s[0:1], {KA['c']}")
    a(f"s_load_dwordx2 s[6:7], s[0:1], {KA['wmod']}")
    a(f"s_load_dwordx2 s[8:9], s[0:1], {KA['ws']}")
    a("s_waitcnt lgkmcnt(0)")
    make_srd(a, 12, 4, SZ['c'])
    make_srd(a, 16, 6, SZ['wmod'])
    make_srd(a, 20, 8, 2688*2)
    make_srd(a, 32, 28, 256)
    a("v_lshlrev_b32 v1, 1, v0")
    a("buffer_load_ushort v2, v1, s[12:15], 0 offen")
    a("buffer_load_ushort v3, v1, s[12:15], 0 offen offset:512")
    a("s_waitcnt vmcnt(0)")
    for r in (2, 3):
        a(f"v_lshlrev_b32 v{r}, 16, v{r}")
        a(f"v_mul_f32 v4, 0xbfb8aa3b, v{r}")
        a(f"v_exp_f32 v4, v4")
        a("s_nop 0")
        a(f"v_add_f32 v4, 1.0, v4")
        a(f"v_rcp_f32 v4, v4")
        a("s_nop 0")
        a(f"v_mul_f32 v{r}, v{r}, v4")
        round_one(a, r, 4)
    a("v_lshlrev_b32 v1, 2, v0")
    a("ds_write_b32 v1, v2")
    a("ds_write_b32 v1, v3 offset:1024")
    a("s_waitcnt lgkmcnt(0)")
    a("s_barrier")
    a("v_and_b32 v1, 31, v0")
    a("v_lshrrev_b32 v2, 5, v0")
    a("s_lshl_b32 s3, s2, 7")
    a("v_mul_u32_u24 v3, 56*5376, v2") if False else None
    a("s_mov_b32 s24, 301056")
    a("v_mul_lo_u32 v3, v2, s24")
    a("v_lshlrev_b32 v4, 2, v1")
    a("v_add3_u32 v3, v3, v4, s3")
    for kk in range(56):
        a(f"s_mov_b32 s25, {kk*5376}")
        a(f"buffer_load_dword v{32+kk}, v3, s[16:19], s25 offen")
    a("v_mul_u32_u24 v5, 224, v2")
    for q in range(14):
        a(f"ds_read_b128 v[{96+4*q}:{99+4*q}], v5 offset:{16*q}")
    a("v_mov_b32 v6, 0")
    a("v_mov_b32 v7, 0")
    a("s_waitcnt lgkmcnt(0)")
    for kk in range(56):
        a(f"s_waitcnt vmcnt({55-kk})")
        a(f"v_lshlrev_b32 v8, 16, v{32+kk}")
        a(f"v_and_b32 v9, 0xffff0000, v{32+kk}")
        a(f"v_fmac_f32 v6, v8, v{96+kk}")
        a(f"v_fmac_f32 v7, v9, v{96+kk}")
    a("v_lshlrev_b32 v8, 8, v2")
    a("v_lshlrev_b32 v9, 3, v1")
    a("v_add_u32 v8, v8, v9")
    a("ds_write_b64 v8, v[6:7] offset:2048")
    a("s_waitcnt lgkmcnt(0)")
    a("s_barrier")
    a("v_cmp_gt_u32 vcc, 64, v0")
    a("s_and_saveexec_b64 s[26:27], vcc")
    a(f"s_cbranch_execz {L_end}")
    a("v_lshlrev_b32 v1, 2, v0")
    for q in range(8):
        a(f"ds_read_b32 v{10+q}, v1 offset:{2048+q*256}")
    a("s_waitcnt lgkmcnt(0)")
    for q in range(1, 8):
        a(f"v_add_f32 v10, v10, v{10+q}")
    a("v_cvt_pk_bf16_f32 v10, v10, v10")
    a("v_lshlrev_b32 v1, 1, v0")
    a("v_add_u32 v1, s3, v1")
    a("buffer_store_short v10, v1, s[20:23], 0 offen sc1")
    a("s_waitcnt vmcnt(0)")
    if fused_label:
        a("s_cmp_ge_u32 s2, 14")
        a(f"s_cbranch_scc1 {L_end}")
        a("v_cmp_eq_u32 vcc, 0, v0")
        a("s_and_b64 exec, exec, vcc")
        a("v_mov_b32 v5, 0")
        a("v_mov_b32 v6, 1")
        a("buffer_atomic_add v6, v5, s[32:35], 0 offen sc1")
        a("s_waitcnt vmcnt(0)")
    a.label(L_end)
    a("s_endpgm")
    return kernel_desc(name, 160, 160)

def wave_sum(a, v, tmp):
    for off in (0x041F, 0x081F, 0x101F, 0x201F, 0x401F):
        a(f"ds_swizzle_b32 v{tmp}, v{v} offset:{off:#x}")
        a("s_waitcnt lgkmcnt(0)")
        a(f"v_add_f32 v{v}, v{v}, v{tmp}")
    a(f"v_mov_b32 v{tmp}, v{v}")
    a("s_nop 1")
    a(f"v_permlane32_swap_b32 v{v}, v{tmp}")
    a("s_nop 1")
    a(f"v_add_f32 v{v}, v{v}, v{tmp}")

def gen_ln(a, name, variant):
    fused = variant == 'F'
    if fused:
        variant = 'A'
        a.label(name)
        a("s_sub_u32 s2, s2, 42")
    else:
        kernel_header(a, name)
    L_end = a.newlabel("Lln_end")
    a(f"s_cmp_ge_u32 s2, 512")
    a(f"s_cbranch_scc1 {L_end}")
    if fused:
        a(f"s_load_dwordx2 s[28:29], s[0:1], {KA['dbg']}")
    a(f"s_load_dwordx2 s[4:5], s[0:1], {KA['x']}")
    a(f"s_load_dwordx2 s[8:9], s[0:1], {KA['ws']}")
    a("s_waitcnt lgkmcnt(0)")
    make_srd(a, 12, 4, SZ['x'])
    make_srd(a, 16, 8, 64 << 20)
    if fused:
        make_srd(a, 32, 28, 256)
    a("v_and_b32 v1, 63, v0")
    a("v_lshrrev_b32 v2, 6, v0")
    a("s_lshl_b32 s3, s2, 2")
    a("v_add_u32 v2, s3, v2")
    a("v_mul_u32_u24 v3, 896, v2")
    a("v_lshlrev_b32 v4, 4, v1")
    a("v_add_u32 v3, v3, v4")
    for r in range(10, 26):
        a(f"v_mov_b32 v{r}, 0")
    for r in range(40, 52):
        a(f"v_mov_b32 v{r}, 0")
    a("v_cmp_gt_u32 vcc, 56, v1")
    a("s_and_saveexec_b64 s[26:27], vcc")
    a("buffer_load_dwordx4 v[20:23], v3, s[12:15], 0 offen")
    si, ci = (0, 1) if variant == 'A' else (3, 4)
    if not fused:
        a(f"buffer_load_dwordx4 v[40:43], v4, s[16:19], 0 offen offset:{WS_MOD + si*896}")
        a(f"buffer_load_dwordx4 v[44:47], v4, s[16:19], 0 offen offset:{WS_MOD + ci*896}")
    if variant == 'B':
        a(f"buffer_load_dwordx4 v[48:51], v4, s[16:19], 0 offen offset:{WS_MOD + 2*896}")
        a("v_lshlrev_b32 v5, 1, v3")
        for p in range(8):
            a(f"s_mov_b32 s24, {WS_PART + p*2048*1792}")
            a(f"buffer_load_dwordx4 v[{64+8*p}:{67+8*p}], v5, s[16:19], s24 offen")
            a(f"buffer_load_dwordx4 v[{68+8*p}:{71+8*p}], v5, s[16:19], s24 offen offset:16")
    a("s_waitcnt vmcnt(0)")
    for i in range(4):
        a(f"v_lshlrev_b32 v{10+2*i}, 16, v{20+i}")
        a(f"v_and_b32 v{11+2*i}, 0xffff0000, v{20+i}")
    if variant == 'B':
        for p in range(1, 8):
            for e in range(8):
                a(f"v_add_f32 v{64+e}, v{64+e}, v{64+8*p+e}")
        for i in range(4):
            round_pair(a, 64+2*i, 65+2*i, 30)
            a(f"v_lshlrev_b32 v31, 16, v{48+i}")
            a(f"v_and_b32 v32, 0xffff0000, v{48+i}")
            a(f"v_mul_f32 v{64+2*i}, v{64+2*i}, v31")
            a(f"v_mul_f32 v{65+2*i}, v{65+2*i}, v32")
            round_pair(a, 64+2*i, 65+2*i, 30)
            a(f"v_add_f32 v{10+2*i}, v{10+2*i}, v{64+2*i}")
            a(f"v_add_f32 v{11+2*i}, v{11+2*i}, v{65+2*i}")
            a(f"v_cvt_pk_bf16_f32 v{20+i}, v{10+2*i}, v{11+2*i}")
            a(f"v_lshlrev_b32 v{10+2*i}, 16, v{20+i}")
            a(f"v_and_b32 v{11+2*i}, 0xffff0000, v{20+i}")
        a(f"s_mov_b32 s24, {WS_X2}")
        a("buffer_store_dwordx4 v[20:23], v3, s[16:19], s24 offen")
    a("s_mov_b64 exec, s[26:27]")
    a("v_add_f32 v26, v10, v11")
    for e in range(2, 8):
        a(f"v_add_f32 v26, v26, v{10+e}")
    wave_sum(a, 26, 27)
    a("v_mul_f32 v26, 0x3b124925, v26")
    a("v_mov_b32 v28, 0")
    for e in range(8):
        a(f"v_sub_f32 v29, v{10+e}, v26")
        a(f"v_fmac_f32 v28, v29, v29")
    a("v_cmp_gt_u32 vcc, 56, v1")
    a("s_nop 1")
    a("v_cndmask_b32 v28, 0, v28, vcc")
    wave_sum(a, 28, 27)
    a("v_mul_f32 v28, 0x3b124925, v28")
    round_pair(a, 26, 28, 27)
    a("v_add_f32 v28, 0x3727c5ac, v28")
    round_one(a, 28, 27)
    a("v_sqrt_f32 v28, v28")
    a("s_nop 0")
    round_one(a, 28, 27)
    a("v_rcp_f32 v28, v28")
    a("s_nop 0")
    if fused:
        Lnp = a.newlabel("Lnp"); Lp = a.newlabel("Lp"); Lpd = a.newlabel("Lpd")
        a("v_lshrrev_b32 v33, 6, v0")
        a("s_nop 0")
        a("v_readfirstlane_b32 s30, v33")
        a("s_nop 3")
        a("s_cmp_lg_u32 s30, 0")
        a(f"s_cbranch_scc1 {Lnp}")
        a("v_mov_b32 v33, 0")
        a.label(Lp)
        a("buffer_load_dword v34, v33, s[32:35], 0 offen sc1")
        a("s_waitcnt vmcnt(0)")
        a("v_readfirstlane_b32 s30, v34")
        a("s_nop 3")
        a("s_cmp_ge_u32 s30, 14")
        a(f"s_cbranch_scc1 {Lpd}")
        a("s_sleep 8")
        a(f"s_branch {Lp}")
        a.label(Lpd)
        a.label(Lnp)
        a("s_barrier")
        a("v_cmp_gt_u32 vcc, 56, v1")
        a("s_and_saveexec_b64 s[26:27], vcc")
        a(f"buffer_load_dwordx4 v[40:43], v4, s[16:19], 0 offen offset:{WS_MOD + si*896} sc1")
        a(f"buffer_load_dwordx4 v[44:47], v4, s[16:19], 0 offen offset:{WS_MOD + ci*896} sc1")
        a("s_waitcnt vmcnt(0)")
        a("s_mov_b64 exec, s[26:27]")
    for i in range(4):
        e0, e1 = 10+2*i, 11+2*i
        a(f"v_sub_f32 v{e0}, v{e0}, v26")
        a(f"v_sub_f32 v{e1}, v{e1}, v26")
        round_pair(a, e0, e1, 30)
        a(f"v_mul_f32 v{e0}, v{e0}, v28")
        a(f"v_mul_f32 v{e1}, v{e1}, v28")
        round_pair(a, e0, e1, 30)
        a(f"v_lshlrev_b32 v31, 16, v{44+i}")
        a(f"v_and_b32 v32, 0xffff0000, v{44+i}")
        a("v_add_f32 v31, 1.0, v31")
        a("v_add_f32 v32, 1.0, v32")
        round_pair(a, 31, 32, 30)
        a(f"v_mul_f32 v{e0}, v{e0}, v31")
        a(f"v_mul_f32 v{e1}, v{e1}, v32")
        round_pair(a, e0, e1, 30)
        a(f"v_lshlrev_b32 v31, 16, v{40+i}")
        a(f"v_and_b32 v32, 0xffff0000, v{40+i}")
        a(f"v_add_f32 v{e0}, v{e0}, v31")
        a(f"v_add_f32 v{e1}, v{e1}, v32")
        a(f"v_cvt_pk_bf16_f32 v{20+i}, v{e0}, v{e1}")
    a("v_cmp_gt_u32 vcc, 56, v1")
    a("s_and_saveexec_b64 s[26:27], vcc")
    a(f"s_mov_b32 s24, {WS_H1 if variant == 'A' else WS_H2}")
    a("v_lshrrev_b32 v30, 5, v2")
    a("v_mul_u32_u24 v30, 28, v30")
    a("v_lshrrev_b32 v31, 1, v1")
    a("v_add_u32 v30, v30, v31")
    a("v_lshlrev_b32 v30, 6, v30")
    a("v_and_b32 v31, 1, v1")
    a("v_lshlrev_b32 v31, 5, v31")
    a("v_and_b32 v32, 31, v2")
    a("v_add3_u32 v30, v30, v31, v32")
    a("v_lshlrev_b32 v30, 4, v30")
    a("buffer_store_dwordx4 v[20:23], v30, s[16:19], s24 offen")
    a("s_waitcnt vmcnt(0)")
    a.label(L_end)
    a("s_endpgm")
    return kernel_desc(name, 128 if variant == 'B' else 64, 128 if variant == 'B' else 64)
```
